```python
import torch

def _softmax(x, axis=-1):
    return torch.softmax(x, dim=axis)
def _gelu(x):
    return torch.nn.functional.gelu(x, approximate="tanh")
def _silu(x):
    return torch.nn.functional.silu(x)
def _sigmoid(x):
    return torch.sigmoid(x)
def _layernorm(x, axis=-1, eps=1e-5):
    m = x.mean(dim=axis, keepdim=True)
    v = x.var(dim=axis, keepdim=True, unbiased=False)
    return (x - m) / torch.sqrt(v + eps)
def _scatter_add(tgt, idx, src, axis=0):
    return tgt.clone().index_add_(axis, idx, src)
def _segment_sum(src, seg, n):
    out = torch.zeros((n,) + src.shape[1:], dtype=src.dtype)
    return out.index_add_(0, seg, src)
def _pad(x, pw):
    flat = tuple(v for pair in reversed(pw) for v in pair)
    return torch.nn.functional.pad(x, flat)

kernel_name = 'concat_heads__mha_block_cached__mha_block_cached__near_ridge'

def setup_inputs():

    _w = (lambda a: (lambda t: t.to(torch.bfloat16) if t.is_floating_point() else t)(torch.as_tensor(a)))
    def _A_setup():
        B, Sq, D = 16, 144, 512
        H, Sk, Dh = 32, 512, 128
        return {
            "x": _w((lambda *s: torch.randn(*s, dtype=torch.bfloat16) * 0.8)(B, Sq, D)),
            "k_cache": _w((lambda *s: torch.randn(*s, dtype=torch.bfloat16) * 0.8)(B, H, Sk, Dh)),
            "v_cache": _w((lambda *s: torch.randn(*s, dtype=torch.bfloat16) * 0.05)(B, H, Sk, Dh)),
            "wq": _w((lambda *s: torch.randn(*s, dtype=torch.bfloat16) * 0.8)(D, H * Dh) * (D ** -0.5)),
            "wo": _w((lambda *s: torch.randn(*s, dtype=torch.bfloat16) * 0.05)(H * Dh, D) * ((H * Dh) ** -0.5)),
        }
    _A_in = _A_setup()

    def _B_setup():
        B, Sq, D = 16, 144, 512
        H, Sk, Dh = 32, 512, 128
        return {
            "x": _w((lambda *s: torch.randn(*s, dtype=torch.bfloat16) * 0.8)(B, Sq, D)),
            "k_cache": _w((lambda *s: torch.randn(*s, dtype=torch.bfloat16) * 0.8)(B, H, Sk, Dh)),
            "v_cache": _w((lambda *s: torch.randn(*s, dtype=torch.bfloat16) * 0.05)(B, H, Sk, Dh)),
            "wq": _w((lambda *s: torch.randn(*s, dtype=torch.bfloat16) * 0.8)(D, H * Dh) * (D ** -0.5)),
            "wo": _w((lambda *s: torch.randn(*s, dtype=torch.bfloat16) * 0.05)(H * Dh, D) * ((H * Dh) ** -0.5)),
        }
    _B_in = _B_setup()

    return {
        "A_x": _A_in["x"],
        "A_k_cache": _A_in["k_cache"],
        "A_v_cache": _A_in["v_cache"],
        "A_wq": _A_in["wq"],
        "A_wo": _A_in["wo"],
        "B_x": _B_in["x"],
        "B_k_cache": _B_in["k_cache"],
        "B_v_cache": _B_in["v_cache"],
        "B_wq": _B_in["wq"],
        "B_wo": _B_in["wo"],
    }

def reference(A_x, A_k_cache, A_v_cache, A_wq, A_wo, B_x, B_k_cache, B_v_cache, B_wq, B_wo):
    def _A_ref(x, k_cache, v_cache, wq, wo):
        B, Sq, D = x.shape
        H, Dh = 32, 128
        q = (lambda x, *d: x.permute(*d))((x @ wq).reshape(B, Sq, H, Dh), 0, 2, 1, 3)
        scores = torch.einsum("bhqd,bhkd->bhqk", q, k_cache) * (Dh ** -0.5)
        p = _softmax(scores, axis=-1)
        o = torch.einsum("bhqk,bhkd->bhqd", p, v_cache)
        return (lambda x, *d: x.permute(*d))(o, 0, 2, 1, 3).reshape(B, Sq, H * Dh) @ wo

    def _B_ref(x, k_cache, v_cache, wq, wo):
        B, Sq, D = x.shape
        H, Dh = 32, 128
        q = (lambda x, *d: x.permute(*d))((x @ wq).reshape(B, Sq, H, Dh), 0, 2, 1, 3)
        scores = torch.einsum("bhqd,bhkd->bhqk", q, k_cache) * (Dh ** -0.5)
        p = _softmax(scores, axis=-1)
        o = torch.einsum("bhqk,bhkd->bhqd", p, v_cache)
        return (lambda x, *d: x.permute(*d))(o, 0, 2, 1, 3).reshape(B, Sq, H * Dh) @ wo

    a = _A_ref(A_x, A_k_cache, A_v_cache, A_wq, A_wo)
    b = _B_ref(B_x, B_k_cache, B_v_cache, B_wq, B_wo)
    return torch.concatenate([a, b], axis=-1)
```

```python
import re

def R(p, a, n=1):
    return [f"{p}{i}" for i in range(a, a + n)]

def rng(p, a, n):
    return f"{p}{a}" if n == 1 else f"{p}[{a}:{a+n-1}]"

class I:
    __slots__ = ("text", "kind", "rd", "wr", "rdC", "seg", "tag", "dl", "cost", "idx", "preds", "succs",
                 "pos", "t", "lq", "anchor", "hint", "vm", "perm", "wide", "after", "cexact")
    def __init__(self, text, kind, rd=(), wr=(), rdC=(), seg=None, tag=None, cost=None, hint=None,
                 vm=None, perm=False, wide=False):
        self.text = text; self.kind = kind
        self.rd = list(rd); self.wr = list(wr); self.rdC = list(rdC)
        self.seg = seg
        self.tag = tag
        self.hint = hint
        self.vm = vm
        self.perm = perm; self.wide = wide
        self.cost = cost if cost is not None else {"trans": 8, "dsw": 12}.get(kind, 4)
        self.dl = None; self.preds = []; self.succs = []; self.pos = None; self.t = None
        self.after = []
    def __repr__(self):
        return self.text

def mfma(d, a, b, c):
    ct = "0" if c == 0 else rng(c[0], c[1], 4)
    rc = [] if c == 0 else R(c[0], c[1], 4)
    x = I(f"v_mfma_f32_16x16x32_bf16 {rng(d[0],d[1],4)}, {rng(a[0],a[1],4)}, {rng(b[0],b[1],4)}, {ct}",
          "mfma", rd=R(a[0], a[1], 4) + R(b[0], b[1], 4) + rc, wr=R(d[0], d[1], 4), rdC=rc)
    return x

_reg = re.compile(r"\b([vas])(\d+)\b|\b([vas])\[(\d+):(\d+)\]|\b(vcc|m0|exec|scc)\b")
def regs_of(s):
    out = []
    for m in _reg.finditer(s):
        if m.group(1): out.append(m.group(1) + m.group(2))
        elif m.group(3): out += R(m.group(3), int(m.group(4)), int(m.group(5)) - int(m.group(4)) + 1)
        else: out.append(m.group(6))
    return out

TRANS = ("v_exp_f32", "v_rcp_f32", "v_log_f32", "v_rsq_f32", "v_sqrt_f32")
def V(text, **kw):
    op, rest = text.split(None, 1)
    ops = [o.strip() for o in rest.split(",")]
    wr = regs_of(ops[0]); rd = regs_of(",".join(ops[1:]))
    perm = op.startswith("v_permlane")
    if perm or op.startswith("v_swap"):
        wr = regs_of(ops[0]) + regs_of(ops[1]); rd = list(wr)
    if op.startswith("v_fmac") or op.startswith("v_dot2c"): rd += wr
    return I(text, "trans" if op in TRANS else "valu", rd=rd, wr=wr, perm=perm, **kw)

def S(text, **kw):
    op, rest = text.split(None, 1)
    ops = [o.strip() for o in rest.split(",")]
    if op.startswith("s_cmp"):
        wr = ["scc"]; rd = regs_of(rest)
    else:
        wr = regs_of(ops[0]); rd = regs_of(",".join(ops[1:]))
        assert not op.startswith(("s_cselect", "s_addc", "s_subb")), "scc not tracked"
    return I(text, "salu", rd=rd, wr=wr, **kw)

def dsr128(d, addr, off, seg=None, **kw):
    return I(f"ds_read_b128 {rng(d[0],d[1],4)}, v{addr} offset:{off}", "dsr", rd=[f"v{addr}"], wr=R(d[0], d[1], 4), seg=seg, tag="b", **kw)
def dsrtr(d, addr, off, seg=None, **kw):
    return I(f"ds_read_b64_tr_b16 {rng(d[0],d[1],2)}, v{addr} offset:{off}", "dsr", rd=[f"v{addr}"], wr=R(d[0], d[1], 2), seg=seg, tag="t", **kw)
def dsw(n, addr, src, off, seg=None, **kw):
    return I(f"ds_write_b{32*n} v{addr}, {rng(src[0],src[1],n)} offset:{off}", "dsw", rd=[f"v{addr}"] + R(src[0], src[1], n), seg=seg, **kw)
def dma(voff, srd, soff, off, flags, seg, tag, **kw):
    so = soff if isinstance(soff, str) else str(soff)
    o = f" offset:{off}" if off else ""
    f = f" {flags}" if flags else ""
    return I(f"buffer_load_dwordx4 v{voff}, s[{srd}:{srd+3}], {so} offen{o}{f} lds", "vmem",
             rd=[f"v{voff}", "m0"] + R("s", srd, 4) + regs_of(so), seg=seg, tag=tag, **kw)
def vload(n, d, voff, srd, soff, off, flags, tag, seg=None, **kw):
    so = soff if isinstance(soff, str) else str(soff)
    o = f" offset:{off}" if off else ""
    f = f" {flags}" if flags else ""
    nm = {1: "dword", 2: "dwordx2", 4: "dwordx4"}[n]
    return I(f"buffer_load_{nm} {rng(d[0],d[1],n)}, v{voff}, s[{srd}:{srd+3}], {so} offen{o}{f}", "vmem",
             rd=[f"v{voff}"] + R("s", srd, 4) + regs_of(so), wr=R(d[0], d[1], n), seg=seg, tag=tag, **kw)
def vstore(n, src, voff, srd, soff, off, flags, tag, seg=None, **kw):
    so = soff if isinstance(soff, str) else str(soff)
    o = f" offset:{off}" if off else ""
    f = f" {flags}" if flags else ""
    nm = {1: "dword", 2: "dwordx2", 4: "dwordx4"}[n]
    return I(f"buffer_store_{nm} {rng(src[0],src[1],n)}, v{voff}, s[{srd}:{srd+3}], {so} offen{o}{f}", "vmem",
             rd=[f"v{voff}"] + R("s", srd, 4) + regs_of(so) + R(src[0], src[1], n), seg=seg, tag=tag, wide=(n == 4), **kw)
def barrier(seg, need):
    return I("s_barrier", "barrier", seg=seg, vm=list(need))
def raw(text, kind="salu", rd=(), wr=(), **kw):
    return I(text, kind, rd=rd, wr=wr, **kw)

def need_states(p, c):
    n = 0
    pw = set(p.wr)
    if p.kind in ("valu", "trans", "blob"):
        if c.kind == "mfma" and pw & set(c.rd): n = max(n, 2)
        if c.perm and pw & set(c.rd): n = max(n, 2)
        if p.kind == "trans" and c.kind in ("valu", "blob") and pw & set(c.rd): n = max(n, 1)
        sw = {r for r in pw if r[0] == "s" or r == "vcc"}
        if sw:
            if c.kind == "vmem" and sw & set(c.rd): n = max(n, 5)
            if c.kind in ("valu", "trans") and sw & set(c.rd): n = max(n, 2)
            if c.kind in ("salu", "branch") and sw & set(c.rd): n = max(n, 1)
        if c.text.startswith(("v_readfirstlane", "v_readlane")) and pw & set(c.rd): n = max(n, 1)
    if p.kind == "mfma":
        if c.kind == "mfma":
            ab = set(c.rd) - set(c.rdC)
            if pw & ab: n = max(n, 8)
            if pw & set(c.rdC) and list(p.wr) != list(c.rdC): n = max(n, 6)
        elif c.kind in ("valu", "trans", "blob", "dsr", "dsw", "vmem"):
            if pw & (set(c.rd) | set(c.wr)): n = max(n, 8)
            if c.kind in ("valu", "trans", "blob") and set(p.rdC) & set(c.wr): n = max(n, 3)
    if p.kind == "salu" and "m0" in pw and c.kind == "vmem" and "m0" in c.rd: n = max(n, 1)
    if p.kind == "vmem" and p.wide and c.kind in ("valu", "trans", "blob") and set(p.rd) & set(c.wr): n = max(n, 2)
    if p.kind == "salu" and "exec" in pw and c.perm: n = max(n, 0)
    return n

def states_of(x):
    if x.kind == "nop": return x.cost
    if x.kind == "label": return 0
    if x.kind == "blob": return 1
    return 1

def pad_hazards(seq, pre=()):
    out = []; ctx = list(pre)[-24:]
    for c in seq:
        need = 0; d = 0
        for p in reversed(ctx):
            if d >= 12: break
            k = need_states(p, c)
            if k - d > need: need = k - d
            d += states_of(p)
        if need > 0:
            nop = I(f"s_nop {need-1}", "nop", cost=need)
            out.append(nop); ctx.append(nop)
        out.append(c); ctx.append(c)
        if len(ctx) > 40: ctx = ctx[-24:]
    return out

def check_hazards(seq, pre=()):
    n = len(pad_hazards(seq, pre)) - len(seq)
    return n

DS_LAT = 128
class Sched:
    def __init__(self, prog, vm_out=(), lookahead=9, name="", pre=()):
        self.prog = prog; self.vmq = list(vm_out); self.la = lookahead; self.name = name; self.pre = list(pre)
    def build(self):
        lastw = {}; readers = {}
        segbar = {}; segops = {}
        prevbar = None; lastvm = None; lastmf = None; lastds = None
        for x in self.prog:
            x.preds = []; x.succs = []
        def edge(a, b):
            if a is not b and a not in b.preds:
                b.preds.append(a); a.succs.append(b)
        for x in self.prog:
            for r in x.rd:
                if r in lastw: edge(lastw[r], x)
            for r in x.wr:
                if r in lastw: edge(lastw[r], x)
                for y in readers.get(r, ()): edge(y, x)
            for r in x.rd: readers.setdefault(r, []).append(x)
            for r in x.wr:
                lastw[r] = x; readers[r] = []
            for a in x.after: edge(a, x)
            if x.kind == "barrier":
                segbar[x.seg] = x
                if prevbar is not None: edge(prevbar, x)
                prevbar = x
            if x.kind == "vmem":
                if lastvm is not None: edge(lastvm, x)
                lastvm = x
        bars = sorted(segbar)
        for x in self.prog:
            if x.kind != "barrier" and x.seg is not None:
                if x.seg in segbar: edge(segbar[x.seg], x)
                if x.seg + 1 in segbar: edge(x, segbar[x.seg + 1])
        self.mf = [x for x in self.prog if x.kind == "mfma"]
        for i, m in enumerate(self.mf): m.idx = i
        n = 0; self.segstart = {}
        for x in self.prog:
            if x.kind == "mfma": n += 1
            if x.kind == "barrier":
                x.anchor = n; self.segstart[x.seg] = n
        END = len(self.mf) + 2
        order = self._topo()
        for x in reversed(order):
            if x.kind == "mfma": x.dl = x.idx; continue
            d = END
            if x.kind == "barrier": d = x.anchor
            for y in x.succs:
                raw_dep = bool(set(x.wr) & set(y.rd))
                if x.kind == "dsr":
                    g = self.la if (raw_dep and y.kind != "barrier") else (7 if y.kind == "barrier" else 0.1)
                elif x.kind == "dsw": g = 5 if y.kind == "barrier" else 0.1
                elif x.kind == "trans": g = 0.6
                elif x.kind == "barrier": g = 0.0
                else: g = 0.3
                if x.kind == "barrier": continue
                d = min(d, y.dl - g)
            if x.hint is not None and x.seg in self.segstart:
                d = min(d, self.segstart[x.seg] + x.hint)
            x.dl = d
    def _topo(self):
        indeg = {id(x): len(x.preds) for x in self.prog}
        out = []; st = [x for x in self.prog if not x.preds]
        while st:
            x = st.pop(); out.append(x)
            for y in x.succs:
                indeg[id(y)] -= 1
                if indeg[id(y)] == 0: st.append(y)
        assert len(out) == len(self.prog), f"cycle in deps ({self.name})"
        return out
    def emit(self, x):
        x.pos = self.nst; x.t = self.t
        self.out.append(x); self.nst += states_of(x); self.done.add(id(x))
        if x.kind in ("dsr", "dsw"):
            self.lq.append(x)
        if x.kind == "vmem": self.vmq.append(x.tag)
        for y in x.succs:
            self.cnt[id(y)] -= 1
            if self.cnt[id(y)] == 0 and y.kind not in ("mfma",): self.ready.append(y)
    def lgkm_need(self, x):
        touch = set(x.rd) | set(x.wr); last = -1
        for i, y in enumerate(self.lq):
            if y.kind == "dsr" and set(y.wr) & touch: last = i
        if last < 0: return None
        return len(self.lq) - 1 - last
    def emit_wait(self, n, vm=None):
        n = min(n, 15)
        keep = self.lq[len(self.lq) - n:] if n > 0 else []
        gone = self.lq[:len(self.lq) - n] if n > 0 else self.lq
        tneed = max([y.t + DS_LAT for y in gone if y.kind == "dsr"] + [y.t + 64 for y in gone if y.kind == "dsw"] + [0])
        w = I(f"s_waitcnt lgkmcnt({n})" + (f" vmcnt({vm})" if vm is not None else ""), "wait")
        w.pos = self.nst; w.t = self.t; self.out.append(w); self.nst += 1
        self.lq = keep
        if tneed > self.t:
            self.stall += tneed - self.t; self.t = tneed
    def states_ok(self, x):
        for p in x.preds:
            k = need_states(p, x)
            if k and self.nst - p.pos - states_of(p) < k: return False
        return True
    def data_ok(self, x):
        n = self.lgkm_need(x)
        if n is None: return True
        y = self.lq[len(self.lq) - 1 - n]
        return y.t + DS_LAT <= self.t
    def issue_filler(self, x):
        if x in self.ready: self.ready.remove(x)
        if x.kind == "barrier":
            need = set(x.vm); last = -1
            for i, tg in enumerate(self.vmq):
                if tg in need: last = i
            N = len(self.vmq) - 1 - last
            x.lq = N
            self.emit_wait(0, vm=N if last >= 0 else None)
            if last >= 0: self.vmq = self.vmq[last + 1:]
            self.t += 4; self.emit(x); self.t += 8; self.prev = "barrier"; return
        n = self.lgkm_need(x)
        if n is not None:
            self.emit_wait(n); self.t += 4
        c = x.cost
        if x.kind in ("dsr", "dsw", "vmem") and self.prev in ("valu", "trans"): c += 8
        self.emit(x); self.t += c; self.prev = x.kind
    def force(self, x):
        for p in sorted(x.preds, key=lambda q: (q.dl if q.dl is not None else 0)):
            if id(p) not in self.done:
                assert p.kind != "mfma", f"order conflict: {x} needs later mfma {p} ({self.name})"
                self.force(p); self.issue_filler(p)
    def run(self):
        self.build()
        self.out = []; self.done = set(); self.lq = []; self.nst = 0; self.t = 0; self.stall = 0; self.prev = None
        self.cnt = {id(x): len(x.preds) for x in self.prog}
        self.ready = [x for x in self.prog if not x.preds and x.kind != "mfma"]
        pipe = 0
        bars = [x for x in self.prog if x.kind == "barrier"]
        def run_barriers(k):
            for b in bars:
                if id(b) not in self.done and b.anchor <= k:
                    self.force(b); self.issue_filler(b)
        self.segt = {}
        def fill(k, t_end, first):
            nds = 0; nb = 0
            while True:
                cand = [x for x in self.ready if x.kind != "barrier" and self.states_ok(x)]
                cand = [x for x in cand if self.data_ok(x) or x.dl <= k - 2]
                if not cand: return
                cand.sort(key=lambda x: x.dl)
                room = t_end - self.t
                pick = None
                for x in cand:
                    c = x.cost
                    mem = x.kind in ("dsr", "dsw", "vmem")
                    if mem and self.prev in ("valu", "trans"): c += 8
                    if x.kind == "dsr" and (nds >= 2 or (x.tag == "b" and nb >= 1)) and x.dl > k: continue
                    if self.lgkm_need(x) is not None: c += 4
                    if c <= room: pick = x; break
                    if x.dl <= k + 0.5: pick = x; break
                if pick is None: return
                if pick.kind in ("valu", "trans") and self.prev not in ("valu", "trans") and pick.cost < room:
                    for x in cand:
                        if x.kind in ("dsr", "vmem") and x.cost + pick.cost <= room and not (x.kind == "dsr" and (nds >= 2 or (x.tag == "b" and nb >= 1))):
                            pick = x; break
                if pick.kind == "dsr":
                    nds += 1; nb += pick.tag == "b"
                self.issue_filler(pick)
        run_barriers(0)
        for k, m in enumerate(self.mf):
            self.force(m)
            n = self.lgkm_need(m)
            if n is not None:
                self.emit_wait(n); self.t += 4 if self.prev not in ("valu", "trans") else 8
            short = 0
            for p in m.preds:
                q = need_states(p, m) - (self.nst - p.pos - states_of(p))
                short = max(short, q)
            if short > 0: self.t += 4 * short
            if pipe > self.t: self.t = pipe
            t0 = self.t
            self.emit(m); pipe = t0 + 16; self.prev = "mfma"
            self.t = t0 + 4
            used = False
            if k + 1 < len(self.mf):
                nx = self.mf[k + 1]
                if all(id(p) in self.done for p in nx.preds if p.kind == "dsr"):
                    n = self.lgkm_need(nx)
                    if n is not None:
                        self.emit_wait(n); used = True
            pend = [b for b in bars if id(b) not in self.done and b.anchor <= k + 1]
            if pend:
                self.t = max(self.t, t0 + 4)
                run_barriers(k + 1)
                self.prev = "mfma" if self.prev == "barrier" else self.prev
                fill(k + 1, max(pipe, self.t + 8), False)
                continue
            if not used:
                sal = [x for x in self.ready if x.kind in ("salu", "branch") and self.states_ok(x)]
                if sal:
                    sal.sort(key=lambda x: x.dl); x = sal[0]; self.ready.remove(x); self.emit(x)
            self.t = max(self.t, t0 + 8)
            fill(k + 1, pipe, True)
        run_barriers(10**9)
        while True:
            rest = [x for x in self.prog if id(x) not in self.done]
            if not rest: break
            cand = [x for x in self.ready if self.states_ok(x) and self.data_ok(x)] or list(self.ready)
            cand.sort(key=lambda x: (x.dl, self.prog.index(x)))
            self.issue_filler(cand[0])
        self.t = max(self.t, pipe)
        res = pad_hazards(self.out, self.pre)
        self.nnop = len(res) - len(self.out)
        return res
```

```python
import sys, math, struct
from sched import *

NAME = "concat_heads__mha_block_cached__mha_block_cached__near_ridge_kernel"

class Cfg:
    kvf = "nt"
    wqf = "nt"
    xf = "nt"
    wof = "nt"
    la = 9
    dbg = 0
    timing = 0
cfg = Cfg()

KB = 0; VB = 32768; VS = 8256; WB = VB + 4 * VS; MB = WB + 4 * VS
X9 = 0; O9 = 16384; Q9 = 32768; P9 = 36864
DUM = MB + 40960; LDS_TOTAL = DUM + 1024
WOFF = WB - VB
sK, sV, sW, sX, sP, sF, sO, sWo = 8, 12, 16, 20, 24, 28, 32, 36
sWave, sM0K, sM0V, sKV, sWA, sWB_, sWt, sRnd, sC, sThr = 40, 41, 42, 43, 44, 45, 46, 47, 48, 49
sOvf, sMsk = 50, 52
sO9, sOff9, sQ9w, sTag, sJ, sB, sBr = 54, 55, 56, 57, 58, 59, 60
sT0, sT1, sT2, sT3 = 61, 62, 63, 64
sSlC, sSlN, sPst, sFl, sTrip, sOwn = 65, 66, 67, 68, 69, 70
sM0Vs = 71
sR8 = [72, 73, 74]
sOOB = 75
sTm = 76
sDbg = 96
vK = [0, 1, 2, 3]; vK9 = [4, 5]; vT = [6, 7, 8, 9]; vL = 10; vP9w = 11; vdK = 12; vdV = 13; vdW = 14; vTmp = 15
ONES = 16; CI = [20, 24, 28]; LA = [32, 36, 40]
SS = 44; S9 = 60; PP = 64; P9pk = 72; vt0, vt1 = 74, 75; B9x = 76; B9p = 80; Q9r = 84
QACC = 100; OACC = 172
vt2, vt3, vt4, vt5 = 244, 245, 246, 247
RC = [248, 249, 250]
PALT = 164
def St(u, qt): return SS + (u * 2 + qt) * 4
def acc(base, F, u, qt): return base + ((F * 2 + u) * 2 + qt) * 4
def acc9(base, u): return base + 64 + u * 4
def xa(qt, ks): return (qt * 16 + ks) * 4
QC = 128; ST0 = 160; ST1 = 192; AQ = 224; NQ = 8
def qfrag(base, qt, F): return base + (qt * 4 + F) * 4

SCALE = math.log2(math.e) / math.sqrt(128.0)
def f2u(f): return struct.unpack("<I", struct.pack("<f", f))[0]

def P(text):
    text = text.strip()
    if text.endswith(":"): return I(text, "label")
    op = text.split()[0]
    if op.startswith("v_mfma"):
        ops = [o.strip() for o in text.split(None, 1)[1].split(",")]
        rc = regs_of(ops[3])
        return I(text, "mfma", rd=regs_of(ops[1]) + regs_of(ops[2]) + rc, wr=regs_of(ops[0]), rdC=rc)
    if op.startswith("v_"):
        x = V(text)
        if op.startswith(("v_add_co", "v_addc")): x.wr += ["vcc"]
        return x
    if op.startswith("buffer_") or op.startswith("global_"):
        r = regs_of(text.split(None, 1)[1])
        x = I(text, "vmem", rd=r + (["m0"] if text.endswith("lds") else []), wide=("store_dwordx4" in op))
        if "load" in op and not text.endswith("lds"):
            x.wr = regs_of(text.split(None, 1)[1].split(",")[0])
        return x
    if op.startswith("ds_"):
        r = regs_of(text.split(None, 1)[1])
        return I(text, "dsr" if "read" in op else "dsw", rd=r, wr=regs_of(text.split(None, 1)[1].split(",")[0]) if "read" in op else [])
    if op.startswith("s_nop"): return I(text, "nop", cost=int(text.split()[1]) + 1)
    if op in ("s_waitcnt", "s_barrier", "s_endpgm", "s_sleep"): return I(text, "wait")
    if op.startswith(("s_cbranch", "s_branch")): return I(text, "branch", rd=["vcc"] if "vcc" in op else [])
    parts = text.split(None, 1)
    ops = [o.strip() for o in parts[1].split(",")]
    if op.startswith("s_cmp"): return I(text, "salu", rd=regs_of(parts[1]))
    return I(text, "salu", rd=regs_of(",".join(ops[1:])), wr=regs_of(ops[0]))
def PS(block): return [P(l) for l in (x.split(";")[0].strip() for x in block.split("\n")) if l]

class AQ_:
    def __init__(self, quads=None):
        self.k = 0; self.q = quads or [("a", AQ + 4 * i) for i in range(NQ)]
    def get(self):
        q = self.q[self.k % len(self.q)]; self.k += 1; return q

def stamp(n):
    if not cfg.timing: return []
    return [P(f"s_memrealtime s[{sTm+2*n}:{sTm+2*n+1}]")]

def setup():
    t = f"""
    s_cmp_ge_u32 s2, 256
    s_cbranch_scc1 L_end
    s_load_dwordx8 s[44:51], s[0:1], 0
    s_load_dwordx2 s[52:53], s[0:1], 32
    s_load_dwordx2 s[54:55], s[0:1], 40
    s_load_dwordx8 s[76:83], s[0:1], 48
    s_load_dwordx2 s[84:85], s[0:1], 80
    s_load_dwordx2 s[86:87], s[0:1], 88
    s_load_dwordx2 s[88:89], s[0:1], 96
    v_lshrrev_b32 v15, 6, v0
    v_and_b32 v74, 63, v0                 ; lane
    v_readfirstlane_b32 s{sWave}, v15
    s_and_b32 s3, s2, 7                   ; xcd
    s_lshr_b32 s4, s2, 3                  ; idx
    s_lshr_b32 s{sBr}, s3, 2
    s_and_b32 s3, s3, 3
    s_lshl_b32 s3, s3, 1
    s_and_b32 s5, s4, 1
    s_add_u32 s{sJ}, s3, s5
    s_lshr_b32 s{sB}, s4, 1
    s_mov_b32 s{sK+2}, 0x80000
    s_mov_b32 s{sK+3}, 0x20000
    s_mov_b32 s{sV+2}, 0x80000
    s_mov_b32 s{sV+3}, 0x20000
    s_mov_b32 s{sW+2}, 0x400000
    s_mov_b32 s{sW+3}, 0x20000
    s_mov_b32 s{sX+2}, 147456
    s_mov_b32 s{sX+3}, 0x20000
    s_mov_b32 s{sP+2}, 1179648
    s_mov_b32 s{sP+3}, 0x20000
    s_mov_b32 s{sF+2}, 2048
    s_mov_b32 s{sF+3}, 0x20000
    s_mov_b32 s{sO+2}, 294912
    s_mov_b32 s{sO+3}, 0x20000
    s_mov_b32 s{sWo+2}, 0x80000
    s_mov_b32 s{sWo+3}, 0x20000
    s_mov_b32 s{sDbg+2}, 256
    s_mov_b32 s{sDbg+3}, 0x20000
    s_lshl_b32 s3, s{sB}, 3
    s_add_u32 s3, s3, s{sJ}
    s_lshl_b32 s3, s3, 19                 ; (b*32+4j)*131072
    s_mul_i32 s4, s{sB}, 147456
    s_lshl_b32 s5, s{sJ}, 19
    s_lshl_b32 s6, s{sBr}, 4
    s_add_u32 s6, s6, s{sB}               ; cluster
    s_mul_i32 s7, s6, 1179648
    s_lshl_b32 s6, s6, 11
    s_add_u32 s6, s6, 0x2400000
    s_mul_i32 s61, s{sB}, 294912
    s_waitcnt lgkmcnt(0)
    s_cmp_eq_u32 s{sBr}, 0
    s_cselect_b64 s[44:45], s[44:45], s[54:55]
    s_cselect_b64 s[46:47], s[46:47], s[76:77]
    s_cselect_b64 s[48:49], s[48:49], s[78:79]
    s_cselect_b64 s[50:51], s[50:51], s[80:81]
    s_cselect_b64 s[52:53], s[52:53], s[82:83]
    s_add_u32 s{sX}, s44, s4
    s_addc_u32 s{sX+1}, s45, 0
    s_add_u32 s{sK}, s46, s3
    s_addc_u32 s{sK+1}, s47, 0
    s_add_u32 s{sV}, s48, s3
    s_addc_u32 s{sV+1}, s49, 0
    s_mov_b32 s{sW}, s50
    s_mov_b32 s{sW+1}, s51
    s_add_u32 s{sWo}, s52, s5
    s_addc_u32 s{sWo+1}, s53, 0
    s_add_u32 s{sO}, s84, s61
    s_addc_u32 s{sO+1}, s85, 0
    s_mov_b32 s{sDbg}, s86
    s_mov_b32 s{sDbg+1}, s87
    s_add_u32 s{sP}, s88, s7
    s_addc_u32 s{sP+1}, s89, 0
    s_add_u32 s{sF}, s88, s6
    s_addc_u32 s{sF+1}, s89, 0
    s_add_u32 s100, s88, 0x2500000
    s_addc_u32 s101, s89, 0
    s_load_dword s{sTag}, s[{sF}:{sF+1}], 1024
    v_lshrrev_b32 v75, 3, v74
    v_and_b32 v76, 7, v74
    v_bfe_u32 v77, v75, 1, 1              ; (r8>>1)&1
    v_lshlrev_b32 v78, 2, v77
    v_xor_b32 v78, v78, v76
    v_lshlrev_b32 v78, 4, v78             ; (p ^ sV)*16
    s_lshl_b32 s3, s{sWave}, 3
    v_add_u32 v79, s3, v75                ; 8w + r8
    v_lshl_add_u32 v{vdW}, v79, 13, v78
    v_lshl_add_u32 v{vdV}, v79, 8, v78
    s_lshl_b32 s3, s{sWave}, 1
    v_or_b32 v77, s3, v77
    v_xor_b32 v77, v77, v76
    v_lshlrev_b32 v77, 4, v77
    v_lshl_add_u32 v{vdK}, v79, 8, v77
    v_add_u32 v{vdK}, 0x2000, v{vdK}
    v_lshrrev_b32 v77, 1, v75
    v_xor_b32 v77, v77, v76
    v_lshlrev_b32 v77, 4, v77
    s_lshl_b32 s3, s{sWave}, 5
    v_add_u32 v80, s3, v75
    v_lshl_add_u32 v80, v80, 10, v77
    v_xor_b32 v81, 64, v80
    v_and_b32 v83, 15, v74                ; m
    v_lshrrev_b32 v84, 4, v74             ; g
    v_add_u32 v82, 0x80, v83
    v_lshlrev_b32 v82, 10, v82
    v_lshl_add_u32 v82, v84, 4, v82
    s_lshl_b32 s3, s{sWave}, 8
    v_add_u32 v82, s3, v82
    s_lshl_b32 s{sM0K}, s{sWave}, 10
    s_mov_b32 s{sQ9w}, s{sM0K}
    s_lshr_b32 s3, s{sWave}, 1
    s_and_b32 s4, s{sWave}, 1
    s_mul_i32 s5, s3, 2064
    s_add_u32 s5, s5, {VB}
    s_mul_i32 s6, s4, 1032
    s_add_u32 s{sM0V}, s5, s6
    s_mul_i32 s6, s4, 1040
    s_add_u32 s{sM0Vs}, s5, s6
    s_lshl_b32 s5, s3, 13
    s_lshl_b32 s6, s4, 9
    s_add_u32 s{sOff9}, s5, s6
    s_lshl_b32 s{sWA}, s{sJ}, 10
    s_add_u32 s{sWB_}, s{sWA}, 256
    s_mov_b32 s{sR8[0]}, 8192
    s_mov_b32 s{sR8[1]}, 16384
    s_mov_b32 s{sR8[2]}, 24576
    s_mov_b32 s{sOOB}, 0x40000000
    """
    return PS(t)

def w_dma(ks, colreg, slot, seg, tag, hint0=None):
    o = []
    o.append(S(f"s_add_u32 s{sWt}, s{colreg}, {ks*262144}") if ks else S(f"s_mov_b32 s{sWt}, s{colreg}"))
    for c in range(2):
        o.append(S(f"s_add_u32 m0, s{sM0V}, {WOFF + slot*VS + c*(4128-128)}"))
        o.append(dma(vdW, sW, f"s{sWt}", 128 * c, cfg.wqf, seg, tag, hint=None if hint0 is None else hint0 + 3 * c))
    return o
def k_dma(slot, soff, seg, tag, hint0=None):
    o = []
    for c in range(2):
        o.append(S(f"s_add_u32 m0, s{sM0K}, {KB + slot*8192 + c*(4096-128)}") if (slot or c) else S(f"s_mov_b32 m0, s{sM0K}"))
        o.append(dma(vdK, sK, soff, 128 * c, cfg.kvf, seg, tag, hint=None if hint0 is None else hint0 + 3 * c))
    return o
def v_dma(slot, soff, seg, tag, hint0=None):
    o = []
    for c in range(2):
        o.append(S(f"s_add_u32 m0, s{sM0V}, {slot*VS + c*(4128-128)}") if (slot or c) else S(f"s_mov_b32 m0, s{sM0V}"))
        o.append(dma(vdV, sV, soff, 128 * c, cfg.kvf, seg, tag, hint=None if hint0 is None else hint0 + 3 * c))
    return o

def x_dma(batch):
    o = []
    for cc in range(4):
        for rg in range(4):
            idx = (cc & 1) * 4 + rg
            off = (4 * batch + cc) * 128
            base = f"s{sM0K}" if cc < 2 else f"s{sM0Vs}"
            d = idx * (4096 if cc < 2 else 4128)
            o.append(S(f"s_add_u32 m0, {base}, {d}"))
            o.append(S(f"s_mov_b32 s{sT1}, {rg*8192 + off}"))
            o.append(dma(80 + (rg & 1), sX, f"s{sT1}", 0, cfg.xf, None, ("x", batch)))
    return o
XA = [[85, 86], [87, 88]]
def x_reads(batch, segs=None):
    o = []; n = 0
    for cc in range(4):
        for e in range(2):
            for qt in range(2):
                ks = (4 * batch + cc) * 2 + e
                st = 4096 if cc < 2 else 4128
                seg = None if segs is None else segs[n * len(segs) // 16]
                o.append(dsr128(("a", xa(qt, ks)), XA[cc >> 1][e], ((cc & 1) * 4 + 2 * qt) * st, seg=seg)); n += 1
    return o

def setup2():
    o = []
    o += PS(f"""
    s_lshl_b32 s3, s{sB}, 18
    s_add_u32 s3, s3, s{sWA}
    s_lshl_b32 s4, s{sWave}, 11
    s_add_u32 m0, s4, {MB+O9}
    s_nop 0""")
    o.append(dma(vdW, sW, "s3", 0, cfg.wqf, None, ("wm", 0)))
    o += PS(f"s_add_u32 m0, s4, {MB+O9+1024-128}\ns_nop 0")
    o.append(dma(vdW, sW, "s3", 128, cfg.wqf, None, ("wm", 0)))
    o += w_dma(0, sWA, 0, None, ("W", -16))
    o += x_dma(0)
    o += PS(f"s_lshl_b32 s4, s{sWave}, 12")
    for i in range(4):
        o.append(S(f"s_add_u32 m0, s4, {MB + X9 + i*(1024-64)}"))
        o.append(dma(82, sX, "0", 64 * i, cfg.xf, None, ("x9", 0)))
    o += w_dma(1, sWA, 1, None, ("W", -15))
    o += w_dma(2, sWA, 2, None, ("W", -14))
    t = f"""
    v_lshrrev_b32 v75, 2, v83             ; m>>2
    v_and_b32 v76, 3, v83                 ; m&3
    v_lshlrev_b32 v77, 10, v75
    v_lshl_add_u32 v77, v76, 7, v77       ; (m>>2)*1024 + (m&3)*128
    v_lshlrev_b32 v78, 1, v75
    v_bfe_u32 v79, v83, 1, 1
    v_or_b32 v78, v78, v79
    v_xor_b32 v78, v78, v84
    v_lshl_add_u32 v77, v78, 4, v77
    v_add_u32 v{vK9[0]}, s{sOff9}, v77
    v_xor_b32 v{vK9[1]}, 64, v{vK9[0]}
    """
    for fp in range(4):
        t += f"""
    s_xor_b32 s3, s{sWave}, {fp}
    s_lshr_b32 s4, s3, 1
    s_lshl_b32 s4, s4, 12
    s_and_b32 s3, s3, 1
    s_lshl_b32 s3, s3, 6
    v_xor_b32 v79, s3, v77
    v_add_u32 v{90+fp}, s4, v79
    """
    t += f"""
    v_lshrrev_b32 v78, 1, v84
    v_mul_u32_u24 v77, 2064, v78
    v_and_b32 v78, 1, v84
    v_mul_u32_u24 v78, 1032, v78
    v_add_u32 v77, v77, v78
    v_add_u32 v251, {VB}, v77
    v_lshrrev_b32 v78, 1, v75
    v_lshlrev_b32 v78, 2, v78
    v_xor_b32 v78, v78, v76
    v_lshlrev_b32 v78, 4, v78
    v_lshl_add_u32 v252, v75, 7, v78
    """
    for Fp in range(4):
        t += f"""
    s_xor_b32 s3, s{sWave}, {Fp}
    s_lshr_b32 s4, s3, 1
    s_mul_i32 s4, s4, 4128
    s_and_b32 s3, s3, 1
    s_lshl_b32 s3, s3, 6
    v_xor_b32 v79, s3, v252
    v_add3_u32 v{vT[Fp]}, v79, v251, s4
    """
    t += f"""
    v_lshlrev_b32 v253, 4, v74
    v_add_u32 v{vL}, {MB}, v253
    s_lshr_b32 s3, s{sWave}, 1
    s_lshl_b32 s3, s3, 10
    s_and_b32 s4, s{sWave}, 1
    s_lshl_b32 s4, s4, 3
    s_add_u32 s3, s3, s4
    v_add_u32 v{vP9w}, s3, v{vL}
    ; x staging read addresses
    v_and_b32 v75, 7, v83
    v_lshrrev_b32 v76, 1, v83
    v_xor_b32 v76, v76, v84
    v_lshlrev_b32 v76, 4, v76
    v_lshl_add_u32 v76, v75, 7, v76       ; r8*128 + (g ^ (m>>1))*16
    v_lshrrev_b32 v75, 3, v83
    v_xor_b32 v77, 64, v76
    v_lshlrev_b32 v78, 12, v75
    v_add3_u32 v85, v76, v78, s{sM0K}
    v_add3_u32 v86, v77, v78, s{sM0K}
    v_mul_u32_u24 v78, 4128, v75
    v_add3_u32 v87, v76, v78, s{sM0Vs}
    v_add3_u32 v88, v77, v78, s{sM0Vs}
    v_mov_b32 v{vK[0]}, v90
    v_mov_b32 v{vK[1]}, v91
    v_mov_b32 v{vK[2]}, v92
    v_mov_b32 v{vK[3]}, v93
    v_mov_b32 v{ONES}, 0x3f803f80
    v_mov_b32 v{ONES+1}, 0x3f803f80
    v_mov_b32 v{ONES+2}, 0x3f803f80
    v_mov_b32 v{ONES+3}, 0x3f803f80
    s_mov_b32 s{sC}, {f2u(SCALE):#x}
    s_mov_b32 s{sThr}, 0x4f800000
    s_mov_b64 s[{sOvf}:{sOvf+1}], 0
    s_mov_b64 s[{sMsk}:{sMsk+1}], 0
    s_mov_b32 s{sRnd}, 0
    s_add_u32 s{sO9}, s{sQ9w}, {O9 + 3*4096}
    s_mov_b32 s{sKV}, 16384
    s_waitcnt vmcnt(8) lgkmcnt(0)
    s_mul_i32 s{sTag}, s{sTag}, 1664525
    s_add_u32 s{sTag}, s{sTag}, 1013904223
    """
    o += PS(t)
    o += x_reads(0)
    o += PS("s_waitcnt lgkmcnt(0)")
    o += x_dma(1)
    return o

def tile_gemm(prog, aq, accb, ring_off, seg, Fs, bq, b9, first):
    for F in Fs:
        for u in range(2):
            q = aq.get()
            for a in range(2):
                prog.append(dsrtr((q[0], q[1] + 2 * a), vT[F], ring_off + a * 512 + u * 8, seg=seg))
            for qt in range(2):
                d = ("v", acc(accb, F, u, qt))
                prog.append(mfma(d, q, bq[qt], 0 if first else d))
            if F == 0:
                d = ("v", acc9(accb, u))
                prog.append(mfma(d, q, b9, 0 if first else d))

def qp(prog, aq, ks, seg, Fs):
    if 0 in Fs: prog.append(dsr128(("v", B9x), vL, X9 + ks * 1024, seg=seg))
    tile_gemm(prog, aq, QACC, WOFF + (ks % 4) * VS, seg, Fs, [("a", xa(0, ks)), ("a", xa(1, ks))], ("v", B9x), ks == 0)

def pv(prog, aq, T, seg, Fs, pbuf):
    first = (T == 0)
    if 0 in Fs:
        prog.append(dsr128(("v", B9p), vL, P9 + (T % 4) * 1024, seg=seg))
        for qt in range(2):
            prog.append(mfma(("v", LA[qt]), ("v", ONES), ("v", pbuf + 4 * qt), 0 if first else ("v", LA[qt])))
        prog.append(mfma(("v", LA[2]), ("v", ONES), ("v", B9p), 0 if first else ("v", LA[2])))
    tile_gemm(prog, aq, OACC, (T % 4) * VS, seg, Fs, [("v", pbuf), ("v", pbuf + 4)], ("v", B9p), first)

def qk(prog, aq, T, seg):
    for u in range(2):
        for f in range(4):
            q = aq.get()
            prog.append(dsr128(q, vK[f], KB + (T % 4) * 8192 + u * 512, seg=seg))
            for qt in range(2):
                d = ("v", St(u, qt))
                c = d if f else (0 if T == 0 else ("v", CI[qt]))
                prog.append(mfma(d, q, ("a", qfrag(QC, qt, f)), c))

def qk9(prog, aq, T, seg, addr, c0):
    for f in range(4):
        q = aq.get()
        prog.append(dsr128(q, addr[f & 1], KB + (T % 4) * 8192 + (f >> 1) * 4096, seg=seg))
        prog.append(mfma(("v", S9), q, ("v", Q9r + 4 * f), ("v", S9) if f else c0))

def sm9(prog, T, seg):
    for r in range(4): prog.append(V(f"v_exp_f32 v{S9+r}, v{S9+r}"))
    prog.append(V(f"v_cvt_pk_bf16_f32 v{P9pk}, v{S9}, v{S9+1}"))
    prog.append(V(f"v_cvt_pk_bf16_f32 v{P9pk+1}, v{S9+2}, v{S9+3}"))
    prog.append(dsw(2, vP9w, ("v", P9pk), P9 + (T % 4) * 1024, seg=seg))

def sm_exp(prog):
    for u in range(2):
        for qt in range(2):
            for r in range(4): prog.append(V(f"v_exp_f32 v{St(u,qt)+r}, v{St(u,qt)+r}"))
def sm_cvt(prog, pbuf):
    for u in range(2):
        for qt in range(2):
            for h in range(2):
                prog.append(V(f"v_cvt_pk_bf16_f32 v{pbuf+4*qt+2*u+h}, v{St(u,qt)+2*h}, v{St(u,qt)+2*h+1}"))

def xmax(prog, m, t):
    for sw in ("32", "16"):
        prog.append(V(f"v_mov_b32 v{t}, v{m}"))
        prog.append(V(f"v_permlane{sw}_swap_b32 v{m}, v{t}"))
        prog.append(V(f"v_max_f32 v{m}, v{m}, v{t}"))
def max_main(prog):
    for qt in range(2):
        m, t = (vt2, vt3) if qt == 0 else (vt4, vt5)
        a, b = St(0, qt), St(1, qt)
        prog.append(V(f"v_max3_f32 v{m}, v{a}, v{a+1}, v{a+2}"))
        prog.append(V(f"v_max3_f32 v{m}, v{m}, v{a+3}, v{b}"))
        prog.append(V(f"v_max3_f32 v{m}, v{m}, v{b+1}, v{b+2}"))
        prog.append(V(f"v_max_f32 v{m}, v{m}, v{b+3}"))
        xmax(prog, m, t)
        for r in range(4): prog.append(V(f"v_sub_f32 v{CI[qt]+r}, 0, v{m}"))
        for x in (a, b):
            for r in range(4): prog.append(V(f"v_sub_f32 v{x+r}, v{x+r}, v{m}"))
def max_9(prog, aq, seg):
    prog.append(V(f"v_subrev_u32 v{vt0}, s{sOff9}, v{vK9[0]}"))
    prog.append(V(f"v_subrev_u32 v{vt1}, s{sOff9}, v{vK9[1]}"))
    qk9(prog, aq, 0, seg, [vt0, vt1], 0)
    m, t = vt0, vt1
    prog.append(V(f"v_max3_f32 v{m}, v{S9}, v{S9+1}, v{S9+2}"))
    prog.append(V(f"v_max_f32 v{m}, v{m}, v{S9+3}"))
    xmax(prog, m, t)
    for r in range(4): prog.append(V(f"v_sub_f32 v{CI[2]+r}, 0, v{m}"))

def pack_tiles(prog, base, F, qt, scale, dst):
    t0, t1 = acc(base, F, 0, qt), acc(base, F, 1, qt)
    for t in (t0, t1):
        for r in range(4): prog.append(V(f"v_mul_f32 v{t+r}, {scale}, v{t+r}"))
    src = [(t0, t0 + 1), (t0 + 2, t0 + 3), (t1, t1 + 1), (t1 + 2, t1 + 3)]
    inpl = [t0, t0 + 1, t1, t1 + 1]
    for k, (a, b) in enumerate(src):
        d = dst[1] + k if (dst and dst[0] == "v") else inpl[k]
        prog.append(V(f"v_cvt_pk_bf16_f32 v{d}, v{a}, v{b}"))
        if dst and dst[0] == "a": prog.append(V(f"v_accvgpr_write_b32 a{dst[1]+k}, v{d}"))
def pack9(prog, base, scale, soff, off, seg):
    a, b = acc9(base, 0), acc9(base, 1)
    for r in range(8): prog.append(V(f"v_mul_f32 v{a+r}, {scale}, v{a+r}"))
    prog.append(V(f"v_cvt_pk_bf16_f32 v{a}, v{a}, v{a+1}"))
    prog.append(V(f"v_cvt_pk_bf16_f32 v{a+1}, v{a+2}, v{a+3}"))
    prog.append(V(f"v_cvt_pk_bf16_f32 v{a+2}, v{b}, v{b+1}"))
    prog.append(V(f"v_cvt_pk_bf16_f32 v{a+3}, v{b+2}, v{b+3}"))
    prog.append(V(f"v_add_u32 v{vTmp}, s{soff}, v{vL}"))
    prog.append(dsw(4, vTmp, ("v", a), off, seg=seg))

def q_fin(prog, seg):
    for F in range(4): prog.append(dsr128(("v", Q9r + 4 * F), vL, Q9 + F * 1024, seg=seg))
    for F in range(4):
        for qt in range(2): pack_tiles(prog, QACC, F, qt, f"s{sC}", ("a", qfrag(QC, qt, F)))
def q9_fin(prog, seg): pack9(prog, QACC, f"s{sC}", sQ9w, Q9, seg)

_lab = [0]
def o_fin(prog, dst, seg):
    for k in (2, 0, 1):
        prog.append(V(f"v_cmp_nge_f32 vcc, s{sThr}, v{LA[k]}"))
        prog.append(S(f"s_and_b64 vcc, vcc, s[{sMsk}:{sMsk+1}]"))
        prog.append(S(f"s_or_b64 s[{sOvf}:{sOvf+1}], s[{sOvf}:{sOvf+1}], vcc"))
        prog.append(V(f"v_rcp_f32 v{RC[k]}, v{LA[k]}"))
    pack9(prog, OACC, f"v{RC[2]}", sO9, 0, seg)
    for F in range(4):
        for qt in range(2):
            pack_tiles(prog, OACC, F, qt, f"v{RC[qt]}", None if dst == "blob" else ("v", qfrag(dst, qt, F)))
    if dst == "blob":
        _lab[0] += 1; n = _lab[0]
        srcs = []
        def blk(base):
            t = []
            for F in range(4):
                for qt in range(2):
                    t0, t1 = acc(OACC, F, 0, qt), acc(OACC, F, 1, qt)
                    for k, s in enumerate([t0, t0 + 1, t1, t1 + 1]):
                        t.append(f"v_accvgpr_write_b32 a{qfrag(base,qt,F)+k}, v{s}"); srcs.append(f"v{s}")
            return "\n".join(t)
        txt = f"s_cmp_eq_u32 s{sRnd}, 2\ns_cbranch_scc1 L_ob{n}\n{blk(ST0)}\ns_branch L_oj{n}\nL_ob{n}:\n{blk(ST1)}\nL_oj{n}:"
        prog.append(I(txt, "blob", rd=list(set(srcs)) + [f"s{sRnd}"], wr=R("a", ST0, 64), cost=170))

def kv_group(prog, i, doK=True, doV=True):
    if doK: prog += k_dma((i + 3) % 4, f"s{sKV}", i, ("K", i + 3), hint0=2)
    if doV: prog += v_dma((i + 2) % 4, f"s{sKV}", i, ("V", i + 2), hint0=8)
    prog.append(S(f"s_add_u32 s{sKV}, s{sKV}, 8192"))

def need(i, W=True):
    n = [("K", i), ("V", i - 1)]
    if i % 2 == 0: n.append(("K", i + 1))
    if W: n.append(("W", i))
    return n

def prologue():
    prog = []; aq = AQ_()
    for p in range(16):
        nd = [("W", p - 16)]
        if p == 0: nd.append(("x9", 0))
        if p == 3: nd.append(("x", 1))
        prog.append(barrier(p, nd))
        if p == 3: prog += x_reads(1, segs=[3, 4, 5])
        if p == 6: prog += kfill(0, p)
        if p == 7: prog += k_dma(1, "0", p, ("K", 1)) + v_dma(0, "0", p, ("V", 0))
        if p == 14:
            for _ in range(4):
                prog.append(S(f"s_mov_b32 m0, {DUM}"))
                prog.append(dma(vdV, sV, f"s{sOOB}", 0, "", p, ("dum", 0)))
        if p == 15: prog += k_dma(2, f"s{sR8[0]}", p, ("K", 2)) + v_dma(1, f"s{sR8[0]}", p, ("V", 1))
        u = p + 3
        prog += w_dma(u % 16, sWA if u < 16 else sWB_, u % 4, p, ("W", u - 16), hint0=6)
        if p >= 1: qp(prog, aq, p - 1, p - 1, [2, 3])
        qp(prog, aq, p, p, [0, 1] if p < 15 else [0, 1, 2, 3])
        if p == 15: q9_fin(prog, p)
    return prog
def kfill(T, seg):
    o = [V(f"v_subrev_u32 v{vTmp}, 0x2000, v{vdK}")]
    for c in range(2):
        o.append(S(f"s_add_u32 m0, s{sM0K}, {KB + c*(4096-128)}") if c else S(f"s_mov_b32 m0, s{sM0K}"))
        o.append(dma(vTmp, sK, "0", 128 * c, cfg.kvf, seg, ("K", 0)))
    return o

def bodyA():
    prog = []; aq = AQ_()
    for i in range(16):
        prog.append(barrier(i, need(i)))
        kv_group(prog, i)
        u = i + 3
        prog += w_dma(u % 16, sWA if u < 16 else sWB_, u % 4, i, ("W", u), hint0=14)
        if i == 0:
            q_fin(prog, 0)
            pv(prog, aq, -1, 0, [0, 1, 2, 3], PP)
            qk(prog, aq, 0, 0)
            max_9(prog, aq, 0)
            qk9(prog, aq, 0, 0, vK9, ("v", CI[2])); sm9(prog, 0, 0)
            max_main(prog); sm_exp(prog); sm_cvt(prog, PP)
            qp(prog, aq, 0, 0, [0, 1])
            o_fin(prog, "blob", 1)
            continue
        qp(prog, aq, i - 1, i - 1, [2, 3])
        qk(prog, aq, i, i)
        sm_exp(prog)
        if i % 2 == 0:
            qk9(prog, aq, i, i, vK9, ("v", CI[2])); sm9(prog, i, i)
        pv(prog, aq, i - 1, i, [0, 1, 2, 3], PP)
        sm_cvt(prog, PP)
        qp(prog, aq, i, i, [0, 1] if i < 15 else [0, 1, 2, 3])
        if i == 15: q9_fin(prog, i)
    return prog

def wo_dma(n, slicereg, seg, hint0=None):
    h = n % 4; pair = (h + 2) % 4; o = []
    for F in range(4):
        lit = h * 131072 + F * 32768
        o.append(S(f"s_add_u32 s{sWt}, s{slicereg}, {lit}") if lit else S(f"s_mov_b32 s{sWt}, s{slicereg}"))
        o.append(S(f"s_add_u32 m0, s{sM0V}, {pair*2*VS + F*4128}") if (pair or F) else S(f"s_mov_b32 m0, s{sM0V}"))
        o.append(dma(vdW, sWo, f"s{sWt}", 0, cfg.wof, seg, ("O", n), hint=None if hint0 is None else hint0 + 4 * F))
    return o

def pbufB(T): return PP if T % 2 else PALT
def bodyB():
    prog = []; aq = AQ_()
    for i in range(17):
        nd = need(i, W=False) if i < 16 else [("V", 15)]
        prog.append(barrier(i, nd))
        if i < 14: kv_group(prog, i, doK=(i + 3 < 16), doV=(i + 2 < 16))
        if i == 2:
            prog.append(V(f"v_and_b32 v{vTmp}, 0x1fff, v{vdW}"))
            prog.append(V(f"v_lshrrev_b32 v{vdW}, 13, v{vdW}"))
            prog.append(V(f"v_lshl_add_u32 v{vdW}, v{vdW}, 10, v{vTmp}"))
        if i == 9: prog += wo_dma(0, sSlC, i, hint0=14)
        if i == 11: prog += wo_dma(1, sSlC, i, hint0=14)
        if i == 0:
            q_fin(prog, 0)
            pv(prog, aq, -1, 0, [0, 1, 2, 3], PP)
            qk(prog, aq, 0, 0)
            max_9(prog, aq, 0)
            qk9(prog, aq, 0, 0, vK9, ("v", CI[2])); sm9(prog, 0, 0)
            max_main(prog); sm_exp(prog); sm_cvt(prog, pbufB(0))
            o_fin(prog, QACC, 1)
            prog.append(S(f"s_add_u32 s{sO9}, s{sO9}, 4096"))
            continue
        if i >= 2: pv(prog, aq, i - 2, i - 1, [2, 3], pbufB(i - 2))
        if i < 16:
            qk(prog, aq, i, i)
            sm_exp(prog); sm_cvt(prog, pbufB(i))
            if i % 2 == 0:
                qk9(prog, aq, i, i, vK9, ("v", CI[2])); sm9(prog, i, i)
        pv(prog, aq, i - 1, i, [0, 1] if i < 16 else [0, 1, 2, 3], pbufB(i - 1))
    o_fin(prog, QACC + 32, 16)
    prog.append(barrier(17, []))
    return prog

TACC = 20
TPK = 56
vU = [[76, 77], [78, 79], [80, 81], [82, 83]]; vU9 = [84, 85, 86, 87]
vL16, vL8, vFl, vPoll = 88, 89, 90, 91
EU = [92, 96]; E9 = 16
O9r = OACC
def tacc(Fn, u, qt): return TACC + ((Fn * 2 + u) * 2 + qt) * 4
TACC9 = TACC + 32
def ofrag(h, qt, F):
    return [("a", qfrag(ST0, qt, F)), ("a", qfrag(ST1, qt, F)), ("v", qfrag(QACC, qt, F)), ("v", qfrag(QACC + 32, qt, F))][h]

def tail_setup():
    o = wo_dma(2, sSlC, None)
    t = ""
    for f in range(4):
        t += f"""
    s_xor_b32 s3, s{sWave}, {f}
    s_lshl_b32 s4, s3, 10
    v_add_u32 v{vTmp}, s4, v{vL}
    """
        for h in range(4):
            t += f"ds_read_b128 v[{O9r+(h*4+f)*4}:{O9r+(h*4+f)*4+3}], v{vTmp} offset:{O9+h*4096}\n"
        t += f"""
    s_mul_i32 s4, s3, 4128
    v_add3_u32 v{vU[f][0]}, v252, v251, s4
    v_xor_b32 v75, 64, v252
    v_add3_u32 v{vU[f][1]}, v75, v251, s4
    s_lshr_b32 s5, s{sWave}, 1
    s_lshl_b32 s5, s5, 6
    v_xor_b32 v75, s5, v252
    s_and_b32 s5, s{sWave}, 1
    s_lshl_b32 s5, s5, 3
    s_add_u32 s4, s4, s5
    v_add3_u32 v{vU9[f]}, v75, v251, s4
    """
    t += f"""
    v_mov_b32 v{vL16}, v253
    v_lshrrev_b32 v{vL8}, 1, v253
    v_cmp_eq_u32 vcc, 0, v253
    v_mov_b32 v75, s{sOOB}
    v_cndmask_b32 v{vFl}, v75, 0, vcc
    v_mov_b32 v255, s{sTag}
    s_mov_b32 s{sPst}, s{sOOB}
    s_mov_b32 s{sFl}, s{sOOB}
    s_mov_b32 s{sTrip}, 0
    s_waitcnt lgkmcnt(0)
    """
    return o + PS(t)

def tail_regs_head():
    return PS(f"""
    s_add_u32 s{sTrip}, s{sTrip}, 1
    s_add_u32 s3, s{sJ}, s{sTrip}
    s_and_b32 s3, s3, 7
    s_mul_i32 s4, s3, 147456
    s_mul_i32 s5, s{sJ}, 18432
    s_add_u32 s4, s4, s5
    s_mul_i32 s5, s{sWave}, 4608
    s_add_u32 s{sPst}, s4, s5
    s_lshl_b32 s3, s3, 7
    s_lshl_b32 s4, s{sJ}, 4
    s_add_u32 s3, s3, s4
    s_lshl_b32 s4, s{sWave}, 2
    s_add_u32 s{sFl}, s3, s4
    s_mov_b32 s{sSlC}, s{sSlN}
    s_add_u32 s{sSlN}, s{sSlN}, 128
    s_and_b32 s{sSlN}, s{sSlN}, 0x3ff
    """)

def op_kstep(prog, aq, h, f, seg, part):
    pair = (h + 2) % 4; first = (h == 0 and f == 0)
    if part in ("n", "all"):
        q = aq.get()
        for a in range(2): prog.append(dsrtr((q[0], q[1] + 2 * a), vU9[f], pair * 2 * VS + a * 512, seg=seg))
        d = ("v", TACC9)
        prog.append(mfma(d, q, ("v", O9r + (h * 4 + f) * 4), 0 if first else d))
    if part in ("m", "all"):
        for Fn in range(2):
            for u in range(2):
                q = aq.get()
                for a in range(2): prog.append(dsrtr((q[0], q[1] + 2 * a), vU[f][Fn], pair * 2 * VS + a * 512 + u * 8, seg=seg))
                for qt in range(2):
                    d = ("v", tacc(Fn, u, qt))
                    prog.append(mfma(d, q, ofrag(h, qt, f), 0 if first else d))
def t_pack(prog):
    prog.append(V(f"v_cvt_pk_bf16_f32 v{TPK+16}, v{TACC9}, v{TACC9+1}"))
    prog.append(V(f"v_cvt_pk_bf16_f32 v{TPK+17}, v{TACC9+2}, v{TACC9+3}"))
    for Fn in range(2):
        for u in range(2):
            for qt in range(2):
                t = tacc(Fn, u, qt); d = TPK + (qt * 2 + Fn) * 4 + 2 * u
                prog.append(V(f"v_cvt_pk_bf16_f32 v{d}, v{t}, v{t+1}"))
                prog.append(V(f"v_cvt_pk_bf16_f32 v{d+1}, v{t+2}, v{t+3}"))
def tail_trip(last):
    prog = []; aq = AQ_([('a', QC + 4 * i) for i in range(8)] + [('a', AQ + 4 * i) for i in range(8)]); aq.k = 76
    for h in range(4):
        nd = [("O", h)]
        if h == 3: nd.append(("st", 0))
        prog.append(barrier(h, nd))
        if h == 0:
            for Fn in range(2):
                for u in range(2):
                    q = aq.get()
                    for qt in range(2):
                        d = ("v", tacc(Fn, u, qt)); prog.append(mfma(d, q, ofrag(3, qt, 3), d))
            t_pack(prog)
            for k in range(4): prog.append(vstore(4, ("v", TPK + 4 * k), vL16, sP, f"s{sPst}", k * 1024, "sc1", ("st", 0), seg=0))
            prog.append(S(f"s_add_u32 s{sT0}, s{sPst}, 4096"))
            prog.append(vstore(2, ("v", TPK + 16), vL8, sP, f"s{sT0}", 0, "sc1", ("st", 0), seg=0))
        else:
            op_kstep(prog, aq, h - 1, 3, h - 1, "m")
        if h == 3: prog.append(vstore(1, ("v", 255), vFl, sF, f"s{sFl}", 0, "sc1", ("fl", 0), seg=3, hint=1))
        if h == 0: prog += wo_dma(3, sSlC, h, hint0=10)
        elif not last: prog += wo_dma(h + 3, sSlN, h, hint0=4)
        for f in range(3): op_kstep(prog, aq, h, f, h, "all")
        op_kstep(prog, aq, h, 3, h, "n")
        if h == 3:
            if last: op_kstep(prog, aq, 3, 3, 3, "m")
            else:
                for Fn in range(2):
                    for u in range(2):
                        q = aq.get()
                        for a in range(2): prog.append(dsrtr((q[0], q[1] + 2 * a), vU[3][Fn], 1 * 2 * VS + a * 512 + u * 8, seg=3, hint=27))
    return prog

def final():
    t = f"""
    v_lshrrev_b32 v74, 4, v253            ; lane
    v_and_b32 v75, 15, v74                ; m
    v_lshrrev_b32 v76, 4, v74             ; g
    v_lshrrev_b32 v77, 2, v75
    v_and_b32 v78, 1, v75
    v_lshlrev_b32 v78, 4, v78
    v_mov_b32 v79, 0x3f80
    v_lshlrev_b32 v79, v78, v79
    v_cmp_eq_u32 vcc, v76, v77
    v_cndmask_b32 v79, 0, v79, vcc
    v_and_b32 v78, 2, v75
    v_cmp_eq_u32 vcc, 0, v78
    v_cndmask_b32 v{EU[0]}, 0, v79, vcc
    v_cndmask_b32 v{EU[0]+1}, v79, 0, vcc
    v_mov_b32 v{EU[0]+2}, 0
    v_mov_b32 v{EU[0]+3}, 0
    v_mov_b32 v{EU[1]}, 0
    v_mov_b32 v{EU[1]+1}, 0
    v_mov_b32 v{EU[1]+2}, v{EU[0]}
    v_mov_b32 v{EU[1]+3}, v{EU[0]+1}
    v_mov_b32 v{E9}, v{EU[0]}
    v_mov_b32 v{E9+1}, v{EU[0]+1}
    v_mov_b32 v{E9+2}, v{EU[0]}
    v_mov_b32 v{E9+3}, v{EU[0]+1}
    v_accvgpr_write_b32 a126, 0
    v_accvgpr_write_b32 a127, 0
    ; poll: lane s<8 reads flag word (s*4+w) of my line
    v_and_b32 v78, 7, v74
    v_cmp_eq_u32 s[4:5], s{sJ}, v78
    v_lshlrev_b32 v{vPoll}, 4, v78
    s_lshl_b32 s3, s{sJ}, 7
    s_lshl_b32 s6, s{sWave}, 2
    s_add_u32 s3, s3, s6
    s_mov_b32 s7, 0x40000
    L_poll:
    buffer_load_dword v80, v{vPoll}, s[{sF}:{sF+3}], s3 offen sc1
    s_waitcnt vmcnt(0)
    v_cmp_eq_u32 vcc, v80, v255
    s_or_b64 vcc, vcc, s[4:5]
    s_cmp_eq_u64 vcc, -1
    s_cbranch_scc1 L_got
    s_sleep 2
    s_sub_u32 s7, s7, 1
    s_cmp_lg_u32 s7, 0
    s_cbranch_scc1 L_poll
    L_got:
    s_mul_i32 s3, s{sJ}, 147456
    s_mul_i32 s4, s{sWave}, 4608
    s_add_u32 s3, s3, s4
    """
    for k in range(7):
        t += f"""
    s_add_u32 s4, s{sJ}, {7-k}
    s_and_b32 s4, s4, 7
    s_mul_i32 s4, s4, 18432
    s_add_u32 s4, s4, s3
    s_add_u32 s5, s4, 4096
    """
        for c in range(4):
            t += f"buffer_load_dwordx4 a[{k*16+c*4}:{k*16+c*4+3}], v{vL16}, s[{sP}:{sP+3}], s4 offen offset:{c*1024} sc1\n"
        t += f"buffer_load_dwordx2 a[{112+2*k}:{113+2*k}], v{vL8}, s[{sP}:{sP+3}], s5 offen sc1\n"
    t += f"""
    s_lshl_b32 s3, s{sWave}, 5
    v_add_u32 v81, s3, v75
    v_lshlrev_b32 v81, 11, v81
    v_lshl_add_u32 v81, v76, 4, v81       ; (32w+m)*2048 + g*16
    v_add_u32 v82, 0x80, v75
    v_lshlrev_b32 v82, 11, v82
    v_lshl_add_u32 v82, v76, 4, v82
    s_lshr_b32 s3, s{sWave}, 1
    s_lshl_b32 s3, s3, 6
    s_and_b32 s4, s{sWave}, 1
    s_lshl_b32 s4, s4, 3
    s_add_u32 s3, s3, s4
    v_add_u32 v82, s3, v82
    s_lshl_b32 s3, s{sBr}, 10
    s_add_u32 s3, s3, s{sSlC}
    s_add_u32 s4, s3, 32768
    """
    for k in range(7):
        t += f"s_waitcnt vmcnt({5*(6-k)})\n"
        for qt in range(2):
            for Fn in range(2):
                for u in range(2):
                    d = tacc(Fn, u, qt); b = k * 16 + (qt * 2 + Fn) * 4
                    t += f"v_mfma_f32_16x16x32_bf16 v[{d}:{d+3}], v[{EU[u]}:{EU[u]+3}], a[{b}:{b+3}], v[{d}:{d+3}]\n"
        if k % 2 == 1 or k == 6:
            b = 112 + 4 * (k // 2)
            t += f"v_mfma_f32_16x16x32_bf16 v[{TACC9}:{TACC9+3}], v[{E9}:{E9+3}], a[{b}:{b+3}], v[{TACC9}:{TACC9+3}]\n"
    o = PS(t)
    pk = []; t_pack(pk); o += pk[2:] + pk[:2]
    t = ""
    for qt in range(2):
        for Fn in range(2):
            r = TPK + (qt * 2 + Fn) * 4
            t += f"buffer_store_dwordx4 v[{r}:{r+3}], v81, s[{sO}:{sO+3}], s{3+qt} offen offset:{Fn*64}\n"
    t += f"buffer_store_dwordx2 v[{TPK+16}:{TPK+17}], v82, s[{sO}:{sO+3}], s3 offen\n"
    t += f"""
    s_or_b32 s5, s{sJ}, s{sWave}
    s_cmp_eq_u32 s5, 0
    s_cselect_b32 s5, 1024, s{sOOB}
    buffer_store_dword v255, v{vFl}, s[{sF}:{sF+3}], s5 offen
    """
    return o + PS(t)

def shift(q, d, streams):
    return [(s, n + d) if s in streams else (s, n) for (s, n) in q]

def verify_vm(seq, q, name):
    q = list(q)
    import re as _re
    for x in seq:
        if x.kind == "vmem": q.append(x.tag)
        if x.kind == "wait":
            m = _re.search(r"vmcnt\((\d+)\)", x.text)
            if m:
                n = int(m.group(1))
                if len(q) > n: q = q[len(q) - n:] if n else []
        if x.kind == "barrier":
            bad = [t for t in x.vm if t in q]
            assert not bad, f"{name}: barrier {x.seg} misses {bad} q={q}"
    return q

def generate():
    out = []
    su = pad_hazards(setup() + stamp(0) + setup2())
    q = verify_vm(su, [], "setup")
    sp = Sched(prologue(), vm_out=q, lookahead=cfg.la, name="pro", pre=su); pro = sp.run()
    q = verify_vm(pro, q, "pro")
    mid = pad_hazards(stamp(1) + PS(f"s_mov_b32 s{sWA}, s{sWB_}\ns_add_u32 s{sWB_}, s{sWB_}, 256\nL_round:"), pro)
    steady = []
    for i in (-3, -2, -1): steady += [("K", i + 3)] * 2 + [("V", i + 2)] * 2 + [("W", i + 3)] * 2
    sa = Sched(bodyA(), vm_out=steady, lookahead=cfg.la, name="A", pre=pro + mid); A = sa.run()
    endA = PS(f"""
    s_mov_b64 s[{sMsk}:{sMsk+1}], -1
    s_lshl_b32 s3, s{sRnd}, 12
    s_add_u32 s3, s3, s{sQ9w}
    s_add_u32 s{sO9}, s3, {O9}
    s_mov_b32 s{sWA}, s{sWB_}
    s_add_u32 s{sWB_}, s{sWB_}, 256
    s_cmp_ge_u32 s{sRnd}, 1
    s_cselect_b32 s{sWB_}, s{sOOB}, s{sWB_}
    s_add_u32 s{sRnd}, s{sRnd}, 1
    s_cmp_lt_u32 s{sRnd}, 3
    s_cbranch_scc1 L_round
    s_add_u32 s3, s{sJ}, s{sB}
    s_add_u32 s3, s3, 1
    s_and_b32 s3, s3, 7
    s_lshl_b32 s{sSlC}, s3, 7
    s_add_u32 s{sSlN}, s{sSlC}, 128
    s_and_b32 s{sSlN}, s{sSlN}, 0x3ff
    """) + stamp(2)
    for r in range(3):
        q = verify_vm(A, q, f"A{r}"); q = shift(q, -16, "KVW")
    assert check_hazards(A[:30], A + endA) == 0
    sb = Sched(bodyB(), vm_out=steady, lookahead=cfg.la, name="B", pre=A + endA); B = sb.run()
    q = verify_vm(B, q, "B")
    ts = pad_hazards(stamp(3) + tail_setup() + [P("L_trip:")], B)
    q = verify_vm(ts, q, "ts")
    st_t = [("O", 0)] * 4 + [("fl", -1)] + [("O", 1)] * 4 + [("O", 2)] * 4
    st_t = [("O", 0)] * 4 + [("O", 1)] * 4 + [("fl", -1)] + [("O", 2)] * 4
    stt = Sched(tail_trip(False), vm_out=st_t, lookahead=cfg.la, name="T", pre=B + ts); T = stt.run()
    endT = tail_regs_head() + PS(f"s_cmp_lt_u32 s{sTrip}, 7\ns_cbranch_scc1 L_trip") + stamp(4)
    for k in range(7):
        q = verify_vm(T, q, f"T{k}"); q = shift(q, -4, "O"); q = [("fl", -1) if t[0] == "fl" else t for t in q]
    assert check_hazards(T[:30], T + endT) == 0
    stl = Sched(tail_trip(True), vm_out=st_t, lookahead=cfg.la, name="TL", pre=T + endT); TL = stl.run()
    q = verify_vm(TL, q, "TL")
    fin = pad_hazards(stamp(5) + final() + stamp(6), TL)
    tm = []
    if cfg.timing:
        t = "s_waitcnt vmcnt(0) lgkmcnt(0)\n" + f"s_memrealtime s[{sTm+14}:{sTm+15}]\ns_waitcnt lgkmcnt(0)\n"
        for n in range(1, 8): t += f"s_sub_u32 s{sTm+2*n}, s{sTm+2*n}, s{sTm}\nv_mov_b32 v{20+n}, s{sTm+2*n}\n"
        t += f"v_mov_b32 v20, s{sOvf}\ns_lshl_b32 s3, s2, 2\ns_add_u32 s3, s3, s{sWave}\ns_lshl_b32 s3, s3, 5\n"
        t += f"s_mov_b32 s{sF}, s100\ns_mov_b32 s{sF+1}, s101\ns_mov_b32 s{sF+2}, 0x10000\n"
        t += f"buffer_store_dwordx4 v[20:23], v{vFl}, s[{sF}:{sF+3}], s3 offen\nbuffer_store_dwordx4 v[24:27], v{vFl}, s[{sF}:{sF+3}], s3 offen offset:16\n"
        tm = pad_hazards(PS(t), fin)
    stats = {n: (s.t, s.stall, s.nnop, len(s.mf)) for n, s in (("pro", sp), ("A", sa), ("B", sb), ("T", stt), ("TL", stl))}
    allc = su + pro + mid + A + endA + B + ts + T + endT + TL + fin + tm + PS("L_end:\ns_endpgm")
    return allc, stats

HDR = """; Fused MHA (Q projection + attention + output projection + cross-workgroup reduce), generated by gen/gen.py
; @launch grid=(256,1,1) block=(256,1,1) lds={lds}
.amdgcn_target "amdgcn-amd-amdhsa--gfx950"
.text
.globl {n}
.p2align 8
.type {n},@function
{n}:
"""
FTR = """.section .rodata,"a"
.p2align 6
.amdhsa_kernel {n}
  .amdhsa_next_free_vgpr 512
  .amdhsa_next_free_sgpr 102
  .amdhsa_accum_offset 256
  .amdhsa_group_segment_fixed_size 0
  .amdhsa_kernarg_size 104
  .amdhsa_user_sgpr_count 2
  .amdhsa_user_sgpr_kernarg_segment_ptr 1
  .amdhsa_system_sgpr_workgroup_id_x 1
.end_amdhsa_kernel
"""
def text(code):
    return HDR.format(n=NAME, lds=LDS_TOTAL) + "\n".join(x.text for x in code) + "\n" + FTR.format(n=NAME)

if __name__ == "__main__":
    outp = sys.argv[1]
    for a in sys.argv[2:]:
        k, v = a.split("=")
        setattr(cfg, k, int(v) if v.lstrip("-").isdigit() else v.replace("+", " "))
    code, stats = generate()
    s = text(code)
    open(outp, "w").write(s)
    print("instrs", len(code), "bytes", len(s))
    for k, v in stats.items(): print(k, "est cycles", v[0], "stall", v[1], "nops", v[2], "mfma", v[3], "ideal", v[3] * 16)
```

```python
import re

def R(p, a, n=1):
    return [f"{p}{i}" for i in range(a, a + n)]

def rng(p, a, n):
    return f"{p}{a}" if n == 1 else f"{p}[{a}:{a+n-1}]"

class I:
    __slots__ = ("text", "kind", "rd", "wr", "rdC", "seg", "tag", "dl", "cost", "idx", "preds", "succs",
                 "pos", "t", "lq", "anchor", "hint", "vm", "perm", "wide", "after", "cexact", "rel", "est")
    def __init__(self, text, kind, rd=(), wr=(), rdC=(), seg=None, tag=None, cost=None, hint=None,
                 vm=None, perm=False, wide=False, rel=None):
        self.text = text; self.kind = kind
        self.rd = list(rd); self.wr = list(wr); self.rdC = list(rdC)
        self.seg = seg
        self.tag = tag
        self.hint = hint
        self.vm = vm
        self.perm = perm; self.wide = wide
        self.cost = cost if cost is not None else {"trans": 8, "dsw": 16}.get(kind, 4)
        self.dl = None; self.preds = []; self.succs = []; self.pos = None; self.t = None
        self.after = []; self.rel = rel
    def __repr__(self):
        return self.text

def mfma(d, a, b, c):
    ct = "0" if c == 0 else rng(c[0], c[1], 4)
    rc = [] if c == 0 else R(c[0], c[1], 4)
    x = I(f"v_mfma_f32_16x16x32_bf16 {rng(d[0],d[1],4)}, {rng(a[0],a[1],4)}, {rng(b[0],b[1],4)}, {ct}",
          "mfma", rd=R(a[0], a[1], 4) + R(b[0], b[1], 4) + rc, wr=R(d[0], d[1], 4), rdC=rc)
    return x

_reg = re.compile(r"\b([vas])(\d+)\b|\b([vas])\[(\d+):(\d+)\]|\b(vcc|m0|exec|scc)\b")
def regs_of(s):
    out = []
    for m in _reg.finditer(s):
        if m.group(1): out.append(m.group(1) + m.group(2))
        elif m.group(3): out += R(m.group(3), int(m.group(4)), int(m.group(5)) - int(m.group(4)) + 1)
        else: out.append(m.group(6))
    return out

TRANS = ("v_exp_f32", "v_rcp_f32", "v_log_f32", "v_rsq_f32", "v_sqrt_f32")
def V(text, **kw):
    op, rest = text.split(None, 1)
    ops = [o.strip() for o in rest.split(",")]
    wr = regs_of(ops[0]); rd = regs_of(",".join(ops[1:]))
    perm = op.startswith("v_permlane")
    if perm or op.startswith("v_swap"):
        wr = regs_of(ops[0]) + regs_of(ops[1]); rd = list(wr)
    if op.startswith("v_fmac") or op.startswith("v_dot2c"): rd += wr
    return I(text, "trans" if op in TRANS else "valu", rd=rd, wr=wr, perm=perm, **kw)

def S(text, **kw):
    op, rest = text.split(None, 1)
    ops = [o.strip() for o in rest.split(",")]
    if op.startswith("s_cmp"):
        wr = ["scc"]; rd = regs_of(rest)
    else:
        wr = regs_of(ops[0]); rd = regs_of(",".join(ops[1:]))
        assert not op.startswith(("s_cselect", "s_addc", "s_subb")), "scc not tracked"
    return I(text, "salu", rd=rd, wr=wr, **kw)

def dsr128(d, addr, off, seg=None, **kw):
    return I(f"ds_read_b128 {rng(d[0],d[1],4)}, v{addr} offset:{off}", "dsr", rd=[f"v{addr}"], wr=R(d[0], d[1], 4), seg=seg, tag="b", **kw)
def dsrtr(d, addr, off, seg=None, **kw):
    return I(f"ds_read_b64_tr_b16 {rng(d[0],d[1],2)}, v{addr} offset:{off}", "dsr", rd=[f"v{addr}"], wr=R(d[0], d[1], 2), seg=seg, tag="t", **kw)
def dsw(n, addr, src, off, seg=None, **kw):
    return I(f"ds_write_b{32*n} v{addr}, {rng(src[0],src[1],n)} offset:{off}", "dsw", rd=[f"v{addr}"] + R(src[0], src[1], n), seg=seg, **kw)
def dma(voff, srd, soff, off, flags, seg, tag, **kw):
    so = soff if isinstance(soff, str) else str(soff)
    o = f" offset:{off}" if off else ""
    f = f" {flags}" if flags else ""
    return I(f"buffer_load_dwordx4 v{voff}, s[{srd}:{srd+3}], {so} offen{o}{f} lds", "vmem",
             rd=[f"v{voff}", "m0"] + R("s", srd, 4) + regs_of(so), seg=seg, tag=tag, **kw)
def vload(n, d, voff, srd, soff, off, flags, tag, seg=None, **kw):
    so = soff if isinstance(soff, str) else str(soff)
    o = f" offset:{off}" if off else ""
    f = f" {flags}" if flags else ""
    nm = {1: "dword", 2: "dwordx2", 4: "dwordx4"}[n]
    return I(f"buffer_load_{nm} {rng(d[0],d[1],n)}, v{voff}, s[{srd}:{srd+3}], {so} offen{o}{f}", "vmem",
             rd=[f"v{voff}"] + R("s", srd, 4) + regs_of(so), wr=R(d[0], d[1], n), seg=seg, tag=tag, **kw)
def vstore(n, src, voff, srd, soff, off, flags, tag, seg=None, **kw):
    so = soff if isinstance(soff, str) else str(soff)
    o = f" offset:{off}" if off else ""
    f = f" {flags}" if flags else ""
    nm = {1: "dword", 2: "dwordx2", 4: "dwordx4"}[n]
    return I(f"buffer_store_{nm} {rng(src[0],src[1],n)}, v{voff}, s[{srd}:{srd+3}], {so} offen{o}{f}", "vmem",
             rd=[f"v{voff}"] + R("s", srd, 4) + regs_of(so) + R(src[0], src[1], n), seg=seg, tag=tag, wide=(n == 4), **kw)
def barrier(seg, need):
    return I("s_barrier", "barrier", seg=seg, vm=list(need))
def raw(text, kind="salu", rd=(), wr=(), **kw):
    return I(text, kind, rd=rd, wr=wr, **kw)

def need_states(p, c):
    n = 0
    pw = set(p.wr)
    if p.kind in ("valu", "trans", "blob"):
        if c.kind == "mfma" and pw & set(c.rd): n = max(n, 2)
        if c.perm and pw & set(c.rd): n = max(n, 2)
        if p.kind == "trans" and c.kind in ("valu", "blob") and pw & set(c.rd): n = max(n, 1)
        sw = {r for r in pw if r[0] == "s" or r == "vcc"}
        if sw:
            if c.kind == "vmem" and sw & set(c.rd): n = max(n, 5)
            if c.kind in ("valu", "trans") and sw & set(c.rd): n = max(n, 2)
            if c.kind in ("salu", "branch") and sw & set(c.rd): n = max(n, 1)
        if c.text.startswith(("v_readfirstlane", "v_readlane")) and pw & set(c.rd): n = max(n, 1)
    if p.kind == "mfma":
        if c.kind == "mfma":
            ab = set(c.rd) - set(c.rdC)
            if pw & ab: n = max(n, 8)
            if pw & set(c.rdC) and list(p.wr) != list(c.rdC): n = max(n, 6)
        elif c.kind in ("valu", "trans", "blob", "dsr", "dsw", "vmem"):
            if pw & (set(c.rd) | set(c.wr)): n = max(n, 8)
            if c.kind in ("valu", "trans", "blob") and set(p.rdC) & set(c.wr): n = max(n, 3)
    if p.kind == "salu" and "m0" in pw and c.kind == "vmem" and "m0" in c.rd: n = max(n, 1)
    if p.kind == "vmem" and p.wide and c.kind in ("valu", "trans", "blob") and set(p.rd) & set(c.wr): n = max(n, 2)
    if p.kind == "salu" and "exec" in pw and c.perm: n = max(n, 0)
    return n

def states_of(x):
    if x.kind == "nop": return x.cost
    if x.kind == "label": return 0
    if x.kind == "blob": return 1
    return 1

def pad_hazards(seq, pre=()):
    out = []; ctx = list(pre)[-24:]
    for c in seq:
        need = 0; d = 0
        for p in reversed(ctx):
            if d >= 12: break
            k = need_states(p, c)
            if k - d > need: need = k - d
            d += states_of(p)
        if need > 0:
            nop = I(f"s_nop {need-1}", "nop", cost=need)
            out.append(nop); ctx.append(nop)
        out.append(c); ctx.append(c)
        if len(ctx) > 40: ctx = ctx[-24:]
    return out

def check_hazards(seq, pre=()):
    n = len(pad_hazards(seq, pre)) - len(seq)
    return n

DS_LAT = 84
class Sched:
    def __init__(self, prog, vm_out=(), lookahead=6, name="", pre=(), lb=5, sp_e=1.0, sp_v=0.6):
        self.prog = prog; self.vmq = list(vm_out); self.la = lookahead; self.name = name; self.pre = list(pre); self.lb = lb; self.sp_e = sp_e; self.sp_v = sp_v; self.late = 1.5; self.segtime = {}
    def build(self):
        lastw = {}; readers = {}
        segbar = {}; segops = {}
        prevbar = None; lastvm = None; lastmf = None; lastds = None
        for x in self.prog:
            x.preds = []; x.succs = []
        def edge(a, b):
            if a is not b and a not in b.preds:
                b.preds.append(a); a.succs.append(b)
        for x in self.prog:
            for r in x.rd:
                if r in lastw: edge(lastw[r], x)
            for r in x.wr:
                if r in lastw: edge(lastw[r], x)
                for y in readers.get(r, ()): edge(y, x)
            for r in x.rd: readers.setdefault(r, []).append(x)
            for r in x.wr:
                lastw[r] = x; readers[r] = []
            for a in x.after: edge(a, x)
            if x.kind == "barrier":
                segbar[x.seg] = x
                if prevbar is not None: edge(prevbar, x)
                prevbar = x
            if x.kind == "vmem":
                if lastvm is not None: edge(lastvm, x)
                lastvm = x
        bars = sorted(segbar)
        for x in self.prog:
            if x.kind != "barrier" and x.seg is not None:
                if x.seg in segbar: edge(segbar[x.seg], x)
                if x.seg + 1 in segbar: edge(x, segbar[x.seg + 1])
        self.mf = [x for x in self.prog if x.kind == "mfma"]
        for i, m in enumerate(self.mf): m.idx = i
        n = 0; self.segstart = {}
        for x in self.prog:
            if x.kind == "mfma": n += 1
            if x.kind == "barrier":
                x.anchor = n; self.segstart[x.seg] = n
        END = len(self.mf) + 2
        order = self._topo()
        for x in order:
            e = 0.0
            if x.kind == "mfma": x.est = x.idx; continue
            if x.kind == "barrier": x.est = x.anchor; continue
            for p in x.preds:
                g = 0.0
                if p.kind == "mfma": g = 1 + need_states(p, x) / 3.0
                elif p.kind == "dsr" and set(p.wr) & set(x.rd): g = 5
                e = max(e, p.est + g)
            if x.rel is not None and x.seg in self.segstart: e = max(e, self.segstart[x.seg] + x.rel)
            x.est = e
        def base_dl(x):
            d = END
            for y in x.succs:
                raw_dep = bool(set(x.wr) & set(y.rd))
                if x.kind == "dsr":
                    g = self.la if (raw_dep and y.kind != "barrier") else (self.lb if y.kind == "barrier" else 0.1)
                elif x.kind == "dsw": g = 4 if y.kind == "barrier" else 0.1
                elif x.kind == "trans": g = 0.6
                else: g = 0.3
                d = min(d, y.dl - g)
            if not x.succs and x.kind == "dsr": d = len(self.mf) - self.lb
            if x.hint is not None and x.seg in self.segstart:
                d = min(d, self.segstart[x.seg] + x.hint)
            return d
        import heapq
        for x in self.prog:
            x.dl = None
            if x.kind == "mfma": x.dl = x.idx
            if x.kind == "barrier": x.dl = x.anchor
        left = {id(x): sum(1 for y in x.succs if y.kind not in ("mfma", "barrier")) for x in self.prog}
        heap = []; n = 0
        for x in self.prog:
            if x.dl is None and left[id(x)] == 0:
                heapq.heappush(heap, (-base_dl(x), n, x)); n += 1
        last = {}
        segsp = {}
        for sg in self.segstart:
            nds = sum(1 for x in self.prog if x.kind in ("dsr", "dsw") and x.seg == sg)
            end = self.segstart.get(sg + 1, len(self.mf))
            if nds: segsp[sg] = min(1.0, max(0.3, (end - self.segstart[sg] - self.lb + 0.5) / nds))
        space = {"dsr": 1.0, "dsw": 1.0, "trans": self.sp_e, "valu": self.sp_v}
        while heap:
            nd, _, x = heapq.heappop(heap); d = -nd
            cls = "dsr" if x.kind == "dsw" else x.kind
            if cls in space and cls in last:
                sp = space[cls]
                if cls == "dsr" and x.seg in segsp: sp = segsp[x.seg]
                d2 = min(d, last[cls] - sp)
                d = max(d2, min(d, x.est))
            if cls in space: last[cls] = d
            x.dl = d
            for p in x.preds:
                if p.kind in ("mfma", "barrier"): continue
                left[id(p)] -= 1
                if left[id(p)] == 0:
                    heapq.heappush(heap, (-base_dl(p), n, p)); n += 1
    def _topo(self):
        indeg = {id(x): len(x.preds) for x in self.prog}
        out = []; st = [x for x in self.prog if not x.preds]
        while st:
            x = st.pop(); out.append(x)
            for y in x.succs:
                indeg[id(y)] -= 1
                if indeg[id(y)] == 0: st.append(y)
        assert len(out) == len(self.prog), f"cycle in deps ({self.name})"
        return out
    def emit(self, x):
        x.pos = self.nst; x.t = self.t
        self.out.append(x); self.nst += states_of(x); self.done.add(id(x))
        if x.kind in ("dsr", "dsw"):
            self.lq.append(x)
        if x.kind == "vmem": self.vmq.append(x.tag)
        for y in x.succs:
            self.cnt[id(y)] -= 1
            if self.cnt[id(y)] == 0 and y.kind not in ("mfma",): self.ready.append(y)
    def lgkm_need(self, x):
        touch = set(x.rd) | set(x.wr); last = -1
        for i, y in enumerate(self.lq):
            if y.kind == "dsr" and set(y.wr) & touch: last = i
        if last < 0: return None
        return len(self.lq) - 1 - last
    def emit_wait(self, n, vm=None):
        n = min(n, 15)
        keep = self.lq[len(self.lq) - n:] if n > 0 else []
        gone = self.lq[:len(self.lq) - n] if n > 0 else self.lq
        tneed = max([y.t + DS_LAT for y in gone if y.kind == "dsr"] + [y.t + 64 for y in gone if y.kind == "dsw"] + [0])
        w = I(f"s_waitcnt lgkmcnt({n})" + (f" vmcnt({vm})" if vm is not None else ""), "wait")
        w.pos = self.nst; w.t = self.t; self.out.append(w); self.nst += 1
        self.lq = keep
        if tneed > self.t:
            self.stall += tneed - self.t; self.t = tneed
    def states_ok(self, x):
        for p in x.preds:
            k = need_states(p, x)
            if k and self.nst - p.pos - states_of(p) < k: return False
        return True
    def data_ok(self, x):
        n = self.lgkm_need(x)
        if n is None: return True
        y = self.lq[len(self.lq) - 1 - n]
        return y.t + DS_LAT <= self.t
    def issue_filler(self, x):
        if x in self.ready: self.ready.remove(x)
        if x.kind == "barrier":
            need = set(x.vm); last = -1
            for i, tg in enumerate(self.vmq):
                if tg in need: last = i
            N = len(self.vmq) - 1 - last
            x.lq = N; self.segtime[x.seg] = self.t
            self.emit_wait(0, vm=N if last >= 0 else None)
            if last >= 0: self.vmq = self.vmq[last + 1:]
            self.t += 4; self.emit(x); self.t += 12; self.prev = "barrier"; return
        n = self.lgkm_need(x)
        if n is not None:
            self.emit_wait(n); self.t += 4
        c = self.cost_now(x)
        self.emit(x); self.t += c; self.prev = x.kind
    def cost_now(self, x):
        c = x.cost
        if x.kind in ("dsr", "dsw", "vmem"):
            if self.prev in ("valu", "trans", "blob"): c += 8
            elif x.kind != "vmem" and self.prev in ("dsr", "dsw", "vmem"): c += 4
        return c
    def force(self, x):
        for p in sorted(x.preds, key=lambda q: (q.dl if q.dl is not None else 0)):
            if id(p) not in self.done:
                assert p.kind != "mfma", f"order conflict: {x} needs later mfma {p} ({self.name})"
                self.force(p); self.issue_filler(p)
    def run(self):
        self.build()
        self.out = []; self.done = set(); self.lq = []; self.nst = 0; self.t = 0; self.stall = 0; self.prev = None
        self.cnt = {id(x): len(x.preds) for x in self.prog}
        self.ready = [x for x in self.prog if not x.preds and x.kind != "mfma"]
        pipe = 0
        bars = [x for x in self.prog if x.kind == "barrier"]
        def run_barriers(k):
            for b in bars:
                if id(b) not in self.done and b.anchor <= k:
                    self.force(b); self.issue_filler(b)
        self.segt = {}
        def fill(k, t_end, first):
            while True:
                cand = [x for x in self.ready if x.kind != "barrier" and self.states_ok(x)]
                cand = [x for x in cand if self.data_ok(x) or x.dl <= k - 2]
                cand = [x for x in cand if x.rel is None or x.seg not in self.segstart or k >= self.segstart[x.seg] + x.rel]
                if not cand: return
                cand.sort(key=lambda x: x.dl)
                room = t_end - self.t
                def cst(x): return self.cost_now(x) + (4 if self.lgkm_need(x) is not None else 0)
                pick = None
                fresh = self.prev not in ("valu", "trans", "blob", "dsr", "dsw", "vmem")
                urgent = [x for x in cand if x.dl <= k + 0.5]
                if room <= -4: urgent = [x for x in urgent if x.dl <= k - self.late]
                if urgent:
                    pick = urgent[0]
                    if fresh or self.prev == "dsr":
                        for x in urgent:
                            if (x.kind == "dsr" and fresh) or x.kind == "vmem": pick = x; break
                        if fresh:
                            for x in urgent:
                                if x.kind == "dsr": pick = x; break
                else:
                    for x in cand:
                        if cst(x) <= room: pick = x; break
                if pick is None: return
                if pick.kind in ("valu", "salu", "vmem") and fresh:
                    for x in cand:
                        if x.kind == "dsr" and cst(x) + pick.cost <= room: pick = x; break
                if pick.kind in ("valu", "salu") and (fresh or self.prev == "dsr") :
                    for x in cand:
                        if x.kind == "vmem" and cst(x) + pick.cost <= room: pick = x; break
                self.issue_filler(pick)
        run_barriers(0)
        for k, m in enumerate(self.mf):
            self.force(m)
            n = self.lgkm_need(m)
            if n is not None:
                self.emit_wait(n); self.t += 4 if self.prev not in ("valu", "trans") else 8
            short = 0
            for p in m.preds:
                q = need_states(p, m) - (self.nst - p.pos - states_of(p))
                short = max(short, q)
            if short > 0: self.t += 4 * short
            if pipe > self.t: self.t = pipe
            t0 = self.t
            self.emit(m); pipe = t0 + 16; self.prev = "mfma"
            self.t = t0 + 4
            used = False
            if k + 1 < len(self.mf):
                nx = self.mf[k + 1]
                if all(id(p) in self.done for p in nx.preds if p.kind == "dsr"):
                    n = self.lgkm_need(nx)
                    if n is not None:
                        self.emit_wait(n); used = True
            pend = [b for b in bars if id(b) not in self.done and b.anchor <= k + 1]
            if pend:
                self.t = max(self.t, t0 + 4)
                run_barriers(k + 1)
                self.prev = "mfma" if self.prev == "barrier" else self.prev
                fill(k + 1, max(pipe, self.t + 8), False)
                continue
            if not used:
                sal = [x for x in self.ready if x.kind in ("salu", "branch") and self.states_ok(x)]
                if sal:
                    sal.sort(key=lambda x: x.dl); x = sal[0]; self.ready.remove(x); self.emit(x)
            self.t = max(self.t, t0 + 8)
            fill(k + 1, pipe, True)
        run_barriers(10**9)
        while True:
            rest = [x for x in self.prog if id(x) not in self.done]
            if not rest: break
            cand = [x for x in self.ready if self.states_ok(x) and self.data_ok(x)] or list(self.ready)
            cand.sort(key=lambda x: (x.dl, self.prog.index(x)))
            self.issue_filler(cand[0])
        self.t = max(self.t, pipe)
        res = pad_hazards(self.out, self.pre)
        self.nnop = len(res) - len(self.out)
        return res
```

```python
import sys, math, struct
from sched import *

NAME = "concat_heads__mha_block_cached__mha_block_cached__near_ridge_kernel"

class Cfg:
    kvf = "nt"
    wqf = "nt"
    xf = "nt"
    wof = ""
    la = 6
    rot = 1
    dsp = 4
    kpre = 7
    lnh = 1
    warm = 0
    wcompact = 0
    warm0 = 0
    verbose = 0
    lb = 5
    dbg = 0
    timing = 0
    cpf = 1
    cpff = ''
    nomem = 0
cfg = Cfg()

KB = 0; VB = 32768; VS = 8256; WB = VB + 4 * VS; MB = WB + 4 * VS
X9 = 0; O9 = 16384; Q9 = 32768; P9 = 36864
XS = MB + O9
DUM = XS + 32768; LDS_TOTAL = DUM + 1024
WOFF = WB - VB
sK, sV, sW, sX, sP, sF, sO, sWo = 8, 12, 16, 20, 24, 28, 32, 36
sWave, sM0K, sM0V, sKV, sWA, sWB_, sWt, sRnd, sC, sThr = 40, 41, 42, 43, 44, 45, 46, 47, 48, 49
sOvf, sMsk = 50, 52
sO9, sOff9, sQ9w, sTag, sJ, sB, sBr = 54, 55, 56, 57, 58, 59, 60
sT0, sT1, sT2, sT3 = 61, 62, 63, 64
sSlC, sSlN, sPst, sFl, sTrip, sOwn = 65, 66, 67, 68, 69, 70
sM0Vs = 71
sMx = 70
sOo = [6, 7]
s8k, sNeg = 4, 5
sWj = 45
sR8 = [72, 73, 74]
sOOB = 75
sCP = 3 + 61
sTm = 76
sDbg = 96
sCode = 92
sCoff = 5
vK = [0, 1, 2, 3]; vK9 = [4, 5]; vT = [6, 7, 8, 9]; vL = 10; vP9w = 11; vdK = 12; vdV = 13; vdW = 14; vTmp = 15
ONES = 16; CI = [20, 24, 28]; LA = [32, 36, 40]
SS = 44; S9 = 60; PP = 64; P9pk = 72; vt0, vt1 = 74, 75; B9x = 76; B9p = 80; Q9r = 84
QACC = 100; OACC = 172
vt2, vt3, vt4, vt5 = 244, 245, 246, 247
RC = [248, 249, 250]
PALT = 164
vA = 255
vAT = [95, 96]
def St(u, qt): return SS + (u * 2 + qt) * 4
def acc(base, F, u, qt): return base + ((F * 2 + u) * 2 + qt) * 4
def acc9(base, u): return base + 64 + u * 4
def xa(qt, ks): return (qt * 16 + ks) * 4
QC = 128; ST0 = 160; ST1 = 192; AQ = 224; NQ = 8
def qfrag(base, qt, F): return base + (qt * 4 + F) * 4

SCALE = math.log2(math.e) / math.sqrt(128.0)
def f2u(f): return struct.unpack("<I", struct.pack("<f", f))[0]

def P(text):
    text = text.strip()
    if text.endswith(":"): return I(text, "label")
    op = text.split()[0]
    if op.startswith("v_mfma"):
        ops = [o.strip() for o in text.split(None, 1)[1].split(",")]
        rc = regs_of(ops[3])
        return I(text, "mfma", rd=regs_of(ops[1]) + regs_of(ops[2]) + rc, wr=regs_of(ops[0]), rdC=rc)
    if op.startswith("v_"):
        x = V(text)
        if op.startswith(("v_add_co", "v_addc")): x.wr += ["vcc"]
        return x
    if op.startswith("buffer_") or op.startswith("global_"):
        r = regs_of(text.split(None, 1)[1])
        x = I(text, "vmem", rd=r + (["m0"] if text.endswith("lds") else []), wide=("store_dwordx4" in op))
        if "load" in op and not text.endswith("lds"):
            x.wr = regs_of(text.split(None, 1)[1].split(",")[0])
        return x
    if op.startswith("ds_"):
        r = regs_of(text.split(None, 1)[1])
        return I(text, "dsr" if "read" in op else "dsw", rd=r, wr=regs_of(text.split(None, 1)[1].split(",")[0]) if "read" in op else [])
    if op.startswith("s_nop"): return I(text, "nop", cost=int(text.split()[1]) + 1)
    if op in ("s_waitcnt", "s_barrier", "s_endpgm", "s_sleep"): return I(text, "wait")
    if op.startswith(("s_cbranch", "s_branch")): return I(text, "branch", rd=["vcc"] if "vcc" in op else [])
    parts = text.split(None, 1)
    ops = [o.strip() for o in parts[1].split(",")]
    if op.startswith("s_cmp"): return I(text, "salu", rd=regs_of(parts[1]))
    return I(text, "salu", rd=regs_of(",".join(ops[1:])), wr=regs_of(ops[0]))
def PS(block): return [P(l) for l in (x.split(";")[0].strip() for x in block.split("\n")) if l]

class AQ_:
    def __init__(self, quads=None):
        self.k = 0; self.q = quads or [("a", AQ + 4 * i) for i in range(NQ)]
    def get(self):
        q = self.q[self.k % len(self.q)]; self.k += 1; return q

def stamp(n):
    if not cfg.timing: return []
    r = sTm + 2 * n if n < 8 else 98
    return [P(f"{'s_memrealtime' if cfg.timing == 1 else 's_memtime'} s[{r}:{r+1}]")]

def setup():
    cp = f"""
    s_getpc_b64 s[{sCode}:{sCode+1}]
    L_pc:
    s_sub_u32 s{sCode}, s{sCode}, L_pc-{NAME}
    s_subb_u32 s{sCode+1}, s{sCode+1}, 0
    s_mov_b32 s{sCode+2}, L_end-{NAME}+4
    s_mov_b32 s{sCode+3}, 0x20000
    s_lshl_b32 s4, s4, 2
    s_add_u32 s4, s4, s{sWave}
    s_and_b32 s4, s4, 63
    s_lshl_b32 s{sCP}, s4, 10
    s_mov_b32 m0, {DUM}
    s_nop 0
    buffer_load_dwordx4 v253, s[{sCode}:{sCode+3}], s{sCP} offen {cfg.cpff} lds
    """ if cfg.cpf else ""
    lh = cfg.lnh
    mp = f"""
    s_and_b32 s3, s3, 3
    s_and_b32 s5, s3, {(8 >> lh) - 1}
    s_lshl_b32 s5, s5, {lh}
    s_and_b32 s6, s4, {(1 << lh) - 1}
    s_add_u32 s{sJ}, s5, s6
    s_lshr_b32 s3, s3, {3 - lh}
    s_lshl_b32 s3, s3, {5 - lh}
    s_lshr_b32 s6, s4, {lh}
    s_add_u32 s{sB}, s3, s6
    """
    t = f"""
    s_cmp_ge_u32 s2, 256
    s_cbranch_scc1 L_end
    s_load_dwordx8 s[44:51], s[0:1], 0
    s_load_dwordx4 s[52:55], s[0:1], 32
    s_load_dwordx8 s[76:83], s[0:1], 48
    s_load_dwordx2 s[84:85], s[0:1], 80
    s_load_dwordx2 s[88:89], s[0:1], 96
    {stamp(8)[0].text if cfg.timing else ''}
    v_lshrrev_b32 v15, 6, v0
    v_and_b32 v74, 63, v0                 ; lane
    v_readfirstlane_b32 s{sWave}, v15
    v_lshlrev_b32 v253, 4, v74
    s_and_b32 s3, s2, 7                   ; xcd
    s_lshr_b32 s4, s2, 3                  ; idx
    s_lshr_b32 s{sBr}, s3, 2
    {mp}
    {cp}
    v_lshrrev_b32 v75, 3, v74
    v_and_b32 v76, 7, v74
    v_bfe_u32 v77, v75, 1, 1              ; (r8>>1)&1
    v_lshlrev_b32 v78, 2, v77
    v_xor_b32 v78, v78, v76
    v_lshlrev_b32 v78, 4, v78             ; (p ^ sV)*16
    s_lshl_b32 s3, s{sWave}, 3
    v_add_u32 v79, s3, v75                ; 8w + r8
    v_lshl_add_u32 v{vdW}, v79, {13 if not cfg.wcompact else 8}, v78
    v_lshl_add_u32 v{vdV}, v79, 8, v78
    s_lshl_b32 s3, s{sJ}, {10 if not cfg.wcompact else 19}
    v_add_u32 v{vdW}, s3, v{vdW}
    s_lshl_b32 s3, s{sWave}, 1
    v_or_b32 v77, s3, v77
    v_xor_b32 v77, v77, v76
    v_lshlrev_b32 v77, 4, v77
    v_lshl_add_u32 v{vdK}, v79, 8, v77
    v_lshrrev_b32 v77, 1, v75
    v_xor_b32 v77, v77, v76
    v_lshlrev_b32 v77, 4, v77
    s_lshl_b32 s3, s{sWave}, 5
    v_add_u32 v80, s3, v75
    v_lshl_add_u32 v80, v80, 10, v77
    v_xor_b32 v81, 64, v80
    v_add_u32 v81, 0x2000, v81
    v_add_u32 v82, 0x4000, v80
    v_add_u32 v83, 0x4000, v81
    v_lshl_add_u32 v89, v75, 10, v77
    s_and_b32 s4, s{sWave}, 1
    s_lshl_b32 s3, s4, 6
    v_xor_b32 v89, s3, v89
    s_lshl_b32 s3, s4, 13
    s_lshr_b32 s4, s{sWave}, 1
    s_lshl_b32 s4, s4, 7
    s_add_u32 s3, s3, s4
    s_add_u32 s3, s3, 0x20000
    v_add_u32 v89, s3, v89
    v_and_b32 v94, 15, v74                ; m
    v_lshrrev_b32 v84, 4, v74             ; g
    s_lshl_b32 s{sM0K}, s{sWave}, 10
    s_mov_b32 s{sQ9w}, s{sM0K}
    s_lshr_b32 s3, s{sWave}, 1
    s_and_b32 s4, s{sWave}, 1
    s_mul_i32 s5, s3, 2064
    s_add_u32 s5, s5, {VB}
    s_mul_i32 s6, s4, 1032
    s_add_u32 s{sM0V}, s5, s6
    s_mul_i32 s6, s4, 1040
    s_add_u32 s{sM0Vs}, s5, s6
    s_lshl_b32 s5, s3, 13
    s_lshl_b32 s6, s4, 9
    s_add_u32 s61, s5, s6
    s_lshl_b32 s{sMx}, s{sWave}, 13
    s_add_u32 s{sMx}, s{sMx}, {XS}
    s_mov_b32 s{sW+2}, {0 if cfg.nomem & 2 else 0x400000}
    s_mov_b32 s{sW+3}, 0x20000
    s_mov_b32 s{sX+2}, {0 if cfg.nomem & 16 else 147456}
    s_mov_b32 s{sX+3}, 0x20000
    s_mul_i32 s4, s{sB}, 147456
    s_cmp_eq_u32 s{sBr}, 0
    s_waitcnt lgkmcnt(0)
    s_cselect_b64 s[44:45], s[44:45], s[54:55]
    s_cselect_b64 s[46:47], s[46:47], s[76:77]
    s_cselect_b64 s[48:49], s[48:49], s[78:79]
    s_cselect_b64 s[{sW}:{sW+1}], s[50:51], s[80:81]
    s_cselect_b64 s[52:53], s[52:53], s[82:83]
    s_add_u32 s{sX}, s44, s4
    s_addc_u32 s{sX+1}, s45, 0
    """
    return PS(t)

def setup_srd():
    return PS(f"""
    s_mov_b32 s{sK+2}, {0 if cfg.nomem & 1 else 0x80000}
    s_mov_b32 s{sK+3}, 0x20000
    s_mov_b32 s{sV+2}, {0 if cfg.nomem & 1 else 0x80000}
    s_mov_b32 s{sV+3}, 0x20000
    s_mov_b32 s{sP+2}, {0 if cfg.nomem & 8 else 1179648}
    s_mov_b32 s{sP+3}, 0x20000
    s_mov_b32 s{sF+2}, 2048
    s_mov_b32 s{sF+3}, 0x20000
    s_mov_b32 s{sO+2}, 294912
    s_mov_b32 s{sO+3}, 0x20000
    s_mov_b32 s{sWo+2}, {0 if cfg.nomem & 4 else 0x80000}
    s_mov_b32 s{sWo+3}, 0x20000
    s_lshl_b32 s3, s{sB}, 3
    s_add_u32 s3, s3, s{sJ}
    s_lshl_b32 s3, s3, 19                 ; (b*32+4j)*131072
    s_add_u32 s{sK}, s46, s3
    s_addc_u32 s{sK+1}, s47, 0
    s_add_u32 s{sV}, s48, s3
    s_addc_u32 s{sV+1}, s49, 0
    s_lshl_b32 s5, s{sJ}, 19
    s_add_u32 s{sWo}, s52, s5
    s_addc_u32 s{sWo+1}, s53, 0
    s_mul_i32 s5, s{sB}, 294912
    s_add_u32 s{sO}, s84, s5
    s_addc_u32 s{sO+1}, s85, 0
    s_lshl_b32 s6, s{sBr}, 4
    s_add_u32 s6, s6, s{sB}               ; cluster
    s_mul_i32 s7, s6, 1179648
    s_add_u32 s{sP}, s88, s7
    s_addc_u32 s{sP+1}, s89, 0
    s_lshl_b32 s6, s6, 11
    s_add_u32 s6, s6, 0x2400000
    s_add_u32 s{sF}, s88, s6
    s_addc_u32 s{sF+1}, s89, 0
    s_add_u32 s100, s88, 0x2500000
    s_addc_u32 s101, s89, 0
    s_load_dword s{sTag}, s[{sF}:{sF+1}], 1024
    s_mov_b32 s{sOff9}, s61
    s_mov_b32 s{sWj}, {(256-15*262144 if not cfg.wcompact else 8192) & 0xffffffff:#x}
    s_mov_b32 s{sOOB}, 0x40000000
    """)

def code_pf(seg, hint=None):
    if not cfg.cpf: return []
    return [S(f"s_mov_b32 m0, {DUM}"), dma(253, sCode, f"s{sCP}", 0, cfg.cpff, seg, ("cp", 0), hint=None if hint is None else hint + 2, rel=hint)]

def w_dma(ks, slot, seg, tag, hint0=None):
    o = []
    for c in range(2):
        o.append(S(f"s_add_u32 m0, s{sM0V}, {WOFF + slot*VS + c*(4128-128)}"))
        o.append(dma(vdW, sW, "0", 128 * c, cfg.wqf, seg, tag, hint=None if hint0 is None else hint0 + cfg.dsp * c + 2, rel=None if hint0 is None else hint0 + cfg.dsp * c))
    o.append(V(f"v_add_u32 v{vdW}, {('0x40000' if not cfg.wcompact else '0x2000') if ks < 15 else 's%d' % sWj}, v{vdW}"))
    return o
def k_dma(slot, seg, tag, hint0=None):
    o = []
    for c in range(2):
        o.append(S(f"s_add_u32 m0, s{sM0K}, {KB + slot*8192 + c*(4096-128)}") if (slot or c) else S(f"s_mov_b32 m0, s{sM0K}"))
        o.append(dma(vdK, sK, "0", 128 * c, cfg.kvf, seg, tag, hint=None if hint0 is None else hint0 + cfg.dsp * c + 2, rel=None if hint0 is None else hint0 + cfg.dsp * c))
    return o
def v_dma(slot, seg, tag, hint0=None):
    o = []
    for c in range(2):
        o.append(S(f"s_add_u32 m0, s{sM0V}, {slot*VS + c*(4128-128)}") if (slot or c) else S(f"s_mov_b32 m0, s{sM0V}"))
        o.append(dma(vdV, sV, "0", 128 * c, cfg.kvf, seg, tag, hint=None if hint0 is None else hint0 + cfg.dsp * c + 2, rel=None if hint0 is None else hint0 + cfg.dsp * c))
    return o

XAREA = [0, 0, 1, 1, 2, 2, 1, 1]
XSTR = [4096, 4128, 1024]
def x_dma(c, seg=None, hint0=None):
    o = []; ar = XAREA[c]
    for rg in range(4):
        d = ((c & 1) * 4 + rg) * XSTR[ar] - c * 128
        base = f"s{[sM0K, sM0Vs, sMx][ar]}"
        o.append(S(f"s_add_u32 m0, {base}, {d}") if d >= 0 else S(f"s_sub_u32 m0, {base}, {-d}"))
        o.append(dma(80 + rg, sX, "0", c * 128, cfg.xf, seg, ("x", c), hint=None if hint0 is None else hint0 + 4 * rg + 1, rel=None if hint0 is None else hint0 + 4 * rg))
    return o
def x9_dma(i, seg=None):
    return [S(f"s_add_u32 m0, s{sM0K}, {MB + X9 + i*(4096-256)}"), dma(89, sX, "0", 256 * i, cfg.xf, seg, ("x9", i))]
XA = [[85, 86], [87, 88], [96, 97]]
vX9 = [251, 252]
def x_reads(c, seg=None):
    o = []; ar = XAREA[c]
    for e in range(2):
        for qt in range(2):
            o.append(dsr128(("a", xa(qt, 2 * c + e)), XA[ar][e], ((c & 1) * 4 + 2 * qt) * XSTR[ar], seg=seg))
    return o

def setup2():
    o = []
    o.append(V(f"v_mov_b32 v95, v{vdW}"))
    o += w_dma(0, 0, None, ("W", -16)) + x_dma(0) + x9_dma(0)
    o += w_dma(1, 1, None, ("W", -15)) + x_dma(1)
    nw = cfg.warm
    if nw:
        o += PS(f"""
    s_and_b32 s3, s{sB}, {(32 >> cfg.lnh) - 1}
    s_mul_i32 s3, s3, {nw << 18}
    s_add_u32 s3, s3, {cfg.warm0 << 18}
    v_add_u32 v95, s3, v95""")
    for i in range(nw):
        for c in range(2):
            o += PS(f"s_mov_b32 m0, {DUM-128*c}\ns_nop 0")
            o.append(dma(95, sW, "0", 128 * c, cfg.wqf, None, ("wm", 0)))
        o += PS("v_add_u32 v95, 0x40000, v95")
    o += w_dma(2, 2, None, ("W", -14)) + x_dma(2) + x9_dma(1) + x_dma(3) + x_dma(4) + x9_dma(2) + x_dma(5) + x9_dma(3)
    o += setup_srd() + stamp(0)
    t = f"""
    v_lshrrev_b32 v75, 2, v94             ; m>>2
    v_and_b32 v76, 3, v94                 ; m&3
    v_lshlrev_b32 v77, 10, v75
    v_lshl_add_u32 v77, v76, 7, v77       ; (m>>2)*1024 + (m&3)*128
    v_lshlrev_b32 v78, 1, v75
    v_bfe_u32 v79, v94, 1, 1
    v_or_b32 v78, v78, v79
    v_xor_b32 v78, v78, v84
    v_lshl_add_u32 v77, v78, 4, v77
    v_add_u32 v{vK9[0]}, s{sOff9}, v77
    v_xor_b32 v{vK9[1]}, 64, v{vK9[0]}
    """
    for fp in range(4):
        t += f"""
    s_xor_b32 s3, s{sWave}, {fp}
    s_lshr_b32 s4, s3, 1
    s_lshl_b32 s4, s4, 12
    s_and_b32 s3, s3, 1
    s_lshl_b32 s3, s3, 6
    v_xor_b32 v79, s3, v77
    v_add_u32 v{90+fp}, s4, v79
    """
    t += f"""
    v_lshrrev_b32 v78, 1, v84
    v_mul_u32_u24 v77, 2064, v78
    v_and_b32 v78, 1, v84
    v_mul_u32_u24 v78, 1032, v78
    v_add_u32 v77, v77, v78
    v_add_u32 v98, {VB}, v77
    v_lshrrev_b32 v78, 1, v75
    v_lshlrev_b32 v78, 2, v78
    v_xor_b32 v78, v78, v76
    v_lshlrev_b32 v78, 4, v78
    v_lshl_add_u32 v99, v75, 7, v78
    """
    for Fp in range(4):
        t += f"""
    s_xor_b32 s3, s{sWave}, {Fp}
    s_lshr_b32 s4, s3, 1
    s_mul_i32 s4, s4, 4128
    s_and_b32 s3, s3, 1
    s_lshl_b32 s3, s3, 6
    v_xor_b32 v79, s3, v99
    v_add3_u32 v{vT[Fp]}, v79, v98, s4
    """
    t += f"""
    v_add_u32 v{vL}, {MB}, v253
    s_lshr_b32 s3, s{sWave}, 1
    s_lshl_b32 s3, s3, 10
    s_and_b32 s4, s{sWave}, 1
    s_lshl_b32 s4, s4, 3
    s_add_u32 s3, s3, s4
    v_add_u32 v{vP9w}, s3, v{vL}
    ; x staging read addresses
    v_and_b32 v75, 7, v94
    v_lshrrev_b32 v76, 1, v94
    v_xor_b32 v76, v76, v84
    v_lshlrev_b32 v76, 4, v76
    v_lshl_add_u32 v76, v75, 7, v76       ; r8*128 + (g ^ (m>>1))*16
    v_lshrrev_b32 v75, 3, v94
    v_xor_b32 v77, 64, v76
    v_lshlrev_b32 v78, 12, v75
    v_add3_u32 v85, v76, v78, s{sM0K}
    v_add3_u32 v86, v77, v78, s{sM0K}
    v_mul_u32_u24 v78, 4128, v75
    v_add3_u32 v87, v76, v78, s{sM0Vs}
    v_add3_u32 v88, v77, v78, s{sM0Vs}
    v_lshlrev_b32 v78, 10, v75
    v_add3_u32 v96, v76, v78, s{sMx}
    v_add3_u32 v97, v77, v78, s{sMx}
    v_add_u32 v78, {MB + X9}, v78
    v_add_u32 v{vX9[0]}, v76, v78
    v_add_u32 v{vX9[1]}, v77, v78
    v_mov_b32 v{vK[0]}, v90
    v_mov_b32 v{vK[1]}, v91
    v_mov_b32 v{vK[2]}, v92
    v_mov_b32 v{vK[3]}, v93
    v_mov_b32 v{ONES}, 0x3f803f80
    v_mov_b32 v{ONES+1}, 0x3f803f80
    v_mov_b32 v{ONES+2}, 0x3f803f80
    v_mov_b32 v{ONES+3}, 0x3f803f80
    s_mov_b32 s{sC}, {f2u(SCALE):#x}
    s_mov_b32 s{sThr}, 0x4f800000
    s_mov_b64 s[{sOvf}:{sOvf+1}], 0
    s_mov_b64 s[{sMsk}:{sMsk+1}], 0
    s_mov_b32 s{sRnd}, 0
    s_add_u32 s{sO9}, s{sQ9w}, {O9 + 3*4096}
    s_mul_i32 s{sKV}, s{sB}, {8192*cfg.rot}
    s_and_b32 s{sKV}, s{sKV}, 0x1ffff
    v_add_u32 v{vdK}, s{sKV}, v{vdK}
    v_add_u32 v{vdV}, s{sKV}, v{vdV}
    s_mov_b32 s{s8k}, 8192
    s_mov_b32 s{sNeg}, {(8192-131072) & 0xffffffff:#x}
    s_waitcnt vmcnt({27 + 2*cfg.warm}) lgkmcnt(0)
    s_mul_i32 s{sTag}, s{sTag}, 1664525
    s_add_u32 s{sTag}, s{sTag}, 1013904223
    """
    o += PS(t)
    o += x_reads(0)
    return o

def tile_gemm(prog, aq, accb, ring_off, seg, Fs, bq, b9, first):
    for F in Fs:
        for u in range(2):
            q = aq.get()
            for a in range(2):
                prog.append(dsrtr((q[0], q[1] + 2 * a), vT[F], ring_off + a * 512 + u * 8, seg=seg))
            for qt in range(2):
                d = ("v", acc(accb, F, u, qt))
                prog.append(mfma(d, q, bq[qt], 0 if first else d))
            if F == 0:
                d = ("v", acc9(accb, u))
                prog.append(mfma(d, q, b9, 0 if first else d))

def qp(prog, aq, ks, seg, Fs):
    if 0 in Fs: prog.append(dsr128(("v", B9x), vX9[ks & 1], (ks >> 1) * 2048, seg=seg))
    tile_gemm(prog, aq, QACC, WOFF + (ks % 4) * VS, seg, Fs, [("a", xa(0, ks)), ("a", xa(1, ks))], ("v", B9x), ks == 0)

def pv(prog, aq, T, seg, Fs, pbuf):
    first = (T == 0)
    if 0 in Fs:
        prog.append(dsr128(("v", B9p), vL, P9 + (T % 4) * 1024, seg=seg))
        for qt in range(2):
            prog.append(mfma(("v", LA[qt]), ("v", ONES), ("v", pbuf + 4 * qt), 0 if first else ("v", LA[qt])))
        prog.append(mfma(("v", LA[2]), ("v", ONES), ("v", B9p), 0 if first else ("v", LA[2])))
    tile_gemm(prog, aq, OACC, (T % 4) * VS, seg, Fs, [("v", pbuf), ("v", pbuf + 4)], ("v", B9p), first)

def qk(prog, aq, T, seg):
    for u in range(2):
        for f in range(4):
            q = aq.get()
            prog.append(dsr128(q, vK[f], KB + (T % 4) * 8192 + u * 512, seg=seg))
            for qt in range(2):
                d = ("v", St(u, qt))
                c = d if f else (0 if T == 0 else ("v", CI[qt]))
                prog.append(mfma(d, q, ("a", qfrag(QC, qt, f)), c))

def qk9(prog, aq, T, seg, addr, c0):
    for f in range(4):
        q = aq.get()
        prog.append(dsr128(q, addr[f & 1], KB + (T % 4) * 8192 + (f >> 1) * 4096, seg=seg))
        prog.append(mfma(("v", S9), q, ("v", Q9r + 4 * f), ("v", S9) if f else c0))

def sm9(prog, T, seg):
    for r in range(4): prog.append(V(f"v_exp_f32 v{S9+r}, v{S9+r}"))
    prog.append(V(f"v_cvt_pk_bf16_f32 v{P9pk}, v{S9}, v{S9+1}"))
    prog.append(V(f"v_cvt_pk_bf16_f32 v{P9pk+1}, v{S9+2}, v{S9+3}"))
    prog.append(dsw(2, vP9w, ("v", P9pk), P9 + (T % 4) * 1024, seg=seg))

def sm_exp(prog):
    for u in range(2):
        for qt in range(2):
            for r in range(4): prog.append(V(f"v_exp_f32 v{St(u,qt)+r}, v{St(u,qt)+r}"))
def sm_cvt(prog, pbuf):
    for u in range(2):
        for qt in range(2):
            for h in range(2):
                prog.append(V(f"v_cvt_pk_bf16_f32 v{pbuf+4*qt+2*u+h}, v{St(u,qt)+2*h}, v{St(u,qt)+2*h+1}"))

def xmax(prog, m, t):
    for sw in ("32", "16"):
        prog.append(V(f"v_mov_b32 v{t}, v{m}"))
        prog.append(V(f"v_permlane{sw}_swap_b32 v{m}, v{t}"))
        prog.append(V(f"v_max_f32 v{m}, v{m}, v{t}"))
def max_main(prog):
    for qt in range(2):
        m, t = (vt2, vt3) if qt == 0 else (vt4, vt5)
        a, b = St(0, qt), St(1, qt)
        prog.append(V(f"v_max3_f32 v{m}, v{a}, v{a+1}, v{a+2}"))
        prog.append(V(f"v_max3_f32 v{m}, v{m}, v{a+3}, v{b}"))
        prog.append(V(f"v_max3_f32 v{m}, v{m}, v{b+1}, v{b+2}"))
        prog.append(V(f"v_max_f32 v{m}, v{m}, v{b+3}"))
        xmax(prog, m, t)
        for r in range(4): prog.append(V(f"v_sub_f32 v{CI[qt]+r}, 0, v{m}"))
        for x in (a, b):
            for r in range(4): prog.append(V(f"v_sub_f32 v{x+r}, v{x+r}, v{m}"))
def max_9(prog, aq, seg):
    prog.append(V(f"v_subrev_u32 v{vt0}, s{sOff9}, v{vK9[0]}"))
    prog.append(V(f"v_subrev_u32 v{vt1}, s{sOff9}, v{vK9[1]}"))
    qk9(prog, aq, 0, seg, [vt0, vt1], 0)
    m, t = vt0, vt1
    prog.append(V(f"v_max3_f32 v{m}, v{S9}, v{S9+1}, v{S9+2}"))
    prog.append(V(f"v_max_f32 v{m}, v{m}, v{S9+3}"))
    xmax(prog, m, t)
    for r in range(4): prog.append(V(f"v_sub_f32 v{CI[2]+r}, 0, v{m}"))

def pack_tiles(prog, base, F, qt, scale, dst):
    t0, t1 = acc(base, F, 0, qt), acc(base, F, 1, qt)
    for t in (t0, t1):
        for r in range(4): prog.append(V(f"v_mul_f32 v{t+r}, {scale}, v{t+r}"))
    src = [(t0, t0 + 1), (t0 + 2, t0 + 3), (t1, t1 + 1), (t1 + 2, t1 + 3)]
    inpl = [t0, t0 + 1, t1, t1 + 1]
    for k, (a, b) in enumerate(src):
        d = dst[1] + k if (dst and dst[0] == "v") else inpl[k]
        prog.append(V(f"v_cvt_pk_bf16_f32 v{d}, v{a}, v{b}"))
        if dst and dst[0] == "a": prog.append(V(f"v_accvgpr_write_b32 a{dst[1]+k}, v{d}"))
def pack9(prog, base, scale, soff, off, seg):
    a, b = acc9(base, 0), acc9(base, 1)
    for r in range(8): prog.append(V(f"v_mul_f32 v{a+r}, {scale}, v{a+r}"))
    prog.append(V(f"v_cvt_pk_bf16_f32 v{a}, v{a}, v{a+1}"))
    prog.append(V(f"v_cvt_pk_bf16_f32 v{a+1}, v{a+2}, v{a+3}"))
    prog.append(V(f"v_cvt_pk_bf16_f32 v{a+2}, v{b}, v{b+1}"))
    prog.append(V(f"v_cvt_pk_bf16_f32 v{a+3}, v{b+2}, v{b+3}"))
    prog.append(V(f"v_add_u32 v{vTmp}, s{soff}, v{vL}"))
    prog.append(dsw(4, vTmp, ("v", a), off, seg=seg))

def q_fin(prog, seg):
    for F in range(4): prog.append(dsr128(("v", Q9r + 4 * F), vL, Q9 + F * 1024, seg=seg))
    for F in range(4):
        for qt in range(2): pack_tiles(prog, QACC, F, qt, f"s{sC}", ("a", qfrag(QC, qt, F)))
def q9_fin(prog, seg): pack9(prog, QACC, f"s{sC}", sQ9w, Q9, seg)

_lab = [0]
def o_fin(prog, dst, seg):
    for k in (2, 0, 1):
        prog.append(V(f"v_cmp_nge_f32 vcc, s{sThr}, v{LA[k]}"))
        prog.append(S(f"s_and_b64 vcc, vcc, s[{sMsk}:{sMsk+1}]"))
        prog.append(S(f"s_or_b64 s[{sOvf}:{sOvf+1}], s[{sOvf}:{sOvf+1}], vcc"))
        prog.append(V(f"v_rcp_f32 v{RC[k]}, v{LA[k]}"))
    pack9(prog, OACC, f"v{RC[2]}", sO9, 0, seg)
    for F in range(4):
        for qt in range(2):
            pack_tiles(prog, OACC, F, qt, f"v{RC[qt]}", None if dst == "blob" else ("v", qfrag(dst, qt, F)))
    if dst == "blob":
        _lab[0] += 1; n = _lab[0]
        srcs = []
        def blk(base):
            t = []
            for F in range(4):
                for qt in range(2):
                    t0, t1 = acc(OACC, F, 0, qt), acc(OACC, F, 1, qt)
                    for k, s in enumerate([t0, t0 + 1, t1, t1 + 1]):
                        t.append(f"v_accvgpr_write_b32 a{qfrag(base,qt,F)+k}, v{s}"); srcs.append(f"v{s}")
            return "\n".join(t)
        txt = f"s_cmp_eq_u32 s{sRnd}, 2\ns_cbranch_scc1 L_ob{n}\n{blk(ST0)}\ns_branch L_oj{n}\nL_ob{n}:\n{blk(ST1)}\nL_oj{n}:"
        prog.append(I(txt, "blob", rd=list(set(srcs)) + [f"s{sRnd}"], wr=R("a", ST0, 64), cost=170))

def kv_group(prog, i, doK=True, doV=True, seg=None, h0=0):
    seg = i if seg is None else seg
    if doK:
        prog += k_dma((i + 3) % 4, seg, ("K", i + 3), hint0=1)
        d = sOo[i & 1]
        prog.append(S(f"s_add_u32 s{sKV}, s{sKV}, 8192"))
        sel = f"s_cselect_b32 s{d}, 0x22000, s{s8k}" if i + 3 == 15 else f"s_cselect_b32 s{d}, s{s8k}, s{sNeg}"
        prog.append(I(f"s_and_b32 s{sKV}, s{sKV}, 0x1ffff\n{sel}", "salu", rd=[f"s{sKV}"], wr=[f"s{sKV}", f"s{d}"], cost=8))
        prog.append(V(f"v_add_u32 v{vdK}, s{d}, v{vdK}"))
    if doV:
        prog += v_dma((i + 2) % 4, seg, ("V", i + 2), hint0=1 + 2 * cfg.dsp + h0)
        prog.append(V(f"v_add_u32 v{vdV}, s{sOo[(i-1)&1]}, v{vdV}"))

def need(i, W=True):
    n = [("K", i), ("V", i - 1)]
    if i % 2 == 0: n.append(("K", i + 1))
    if W: n.append(("W", i))
    return n

def prologue():
    prog = []; aq = AQ_()
    for p in range(16):
        nd = [("W", p - 16)]
        if p % 4 == 0: nd.append(("x9", p // 4))
        if p % 2 == 1 and p < 15: nd.append(("x", (p + 1) // 2))
        prog.append(barrier(p, nd))
        if p % 2 == 1 and p < 15: prog += x_reads((p + 1) // 2, p)
        if p in (4, 6): prog += x_dma(p // 2 + 4, p, hint0=0)
        if p == 9: prog += code_pf(p)
        if p == cfg.kpre: kv_group(prog, -3, doV=False, seg=p)
        if p == cfg.kpre + 1: kv_group(prog, -2, doV=False, seg=p)
        if p == 12: kv_group(prog, -2, doK=False, seg=p, h0=-7)
        if p == 14:
            for _ in range(4):
                prog.append(S(f"s_mov_b32 m0, {DUM}"))
                prog.append(dma(vdV, sV, f"s{sOOB}", 0, "", p, ("dum", 0)))
        if p == 15: kv_group(prog, -1, seg=p)
        u = p + 3
        prog += w_dma(u % 16, u % 4, p, ("W", u - 16), hint0=14 if p in (4, 6, 15) else 9 if p in (cfg.kpre, cfg.kpre + 1, 12) else 2)
        if p >= 1: qp(prog, aq, p - 1, p - 1, [2, 3])
        qp(prog, aq, p, p, [0, 1] if p < 15 else [0, 1, 2, 3])
        if p == 15: q9_fin(prog, p)
    return prog

def bodyA():
    prog = []; aq = AQ_()
    for i in range(16):
        prog.append(barrier(i, need(i)))
        kv_group(prog, i)
        u = i + 3
        prog += w_dma(u % 16, u % 4, i, ("W", u), hint0=1 + 4 * cfg.dsp)
        if i in (3, 7, 11): prog += code_pf(i, 1 + 6 * cfg.dsp)
        if i == 0:
            q_fin(prog, 0)
            pv(prog, aq, -1, 0, [0, 1, 2, 3], PP)
            qk(prog, aq, 0, 0)
            max_9(prog, aq, 0)
            qk9(prog, aq, 0, 0, vK9, ("v", CI[2])); sm9(prog, 0, 0)
            max_main(prog); sm_exp(prog); sm_cvt(prog, PP)
            qp(prog, aq, 0, 0, [0, 1])
            o_fin(prog, "blob", 1)
            continue
        qp(prog, aq, i - 1, i - 1, [2, 3])
        qk(prog, aq, i, i)
        sm_exp(prog)
        if i % 2 == 0:
            qk9(prog, aq, i, i, vK9, ("v", CI[2])); sm9(prog, i, i)
        pv(prog, aq, i - 1, i, [0, 1, 2, 3], PP)
        sm_cvt(prog, PP)
        qp(prog, aq, i, i, [0, 1] if i < 15 else [0, 1, 2, 3])
        if i == 15: q9_fin(prog, i)
    return prog

def wo_dma(n, slicereg, seg, hint0=None, va=None):
    h = n % 4; pair = (h + 2) % 4; o = []
    for F in range(4):
        lit = h * 131072 + F * 32768
        o.append(S(f"s_add_u32 s{sWt}, s{slicereg}, {lit}") if lit else S(f"s_mov_b32 s{sWt}, s{slicereg}"))
        o.append(S(f"s_add_u32 m0, s{sM0V}, {pair*2*VS + F*4128}") if (pair or F) else S(f"s_mov_b32 m0, s{sM0V}"))
        a = (va or vAT)[F % len(va or vAT)]
        o.append(V(f"v_add_u32 v{a}, s{sWt}, v{vdW}"))
        o.append(dma(a, sWo, "0", 0, cfg.wof, seg, ("O", n), hint=None if hint0 is None else hint0 + cfg.dsp * F + 2, rel=None if hint0 is None else hint0 + cfg.dsp * F))
    return o

def pbufB(T): return PP if T % 2 else PALT
def bodyB():
    prog = []; aq = AQ_()
    for i in range(17):
        nd = need(i, W=False) if i < 16 else [("V", 15)]
        prog.append(barrier(i, nd))
        if i < 14: kv_group(prog, i, doK=(i + 3 < 16), doV=(i + 2 < 16))
        if i == 2:
            prog.append(V(f"v_and_b32 v{vTmp}, 0x7f, v{vdV}"))
            prog.append(V(f"v_bfe_u32 v{vdW}, v{vdV}, 8, 5"))
            prog.append(V(f"v_lshl_add_u32 v{vdW}, v{vdW}, 10, v{vTmp}"))
        if i in (3, 7, 12, 15): prog += code_pf(i, 1 + 6 * cfg.dsp)
        if i == 9: prog += wo_dma(0, sSlC, i, hint0=1 + 4 * cfg.dsp, va=[vA])
        if i == 11: prog += wo_dma(1, sSlC, i, hint0=1 + 4 * cfg.dsp, va=[vA])
        if i == 0:
            q_fin(prog, 0)
            pv(prog, aq, -1, 0, [0, 1, 2, 3], PP)
            qk(prog, aq, 0, 0)
            max_9(prog, aq, 0)
            qk9(prog, aq, 0, 0, vK9, ("v", CI[2])); sm9(prog, 0, 0)
            max_main(prog); sm_exp(prog); sm_cvt(prog, pbufB(0))
            o_fin(prog, QACC, 1)
            prog.append(S(f"s_add_u32 s{sO9}, s{sO9}, 4096"))
            continue
        if i >= 2: pv(prog, aq, i - 2, i - 1, [2, 3], pbufB(i - 2))
        if i < 16:
            qk(prog, aq, i, i)
            sm_exp(prog); sm_cvt(prog, pbufB(i))
            if i % 2 == 0:
                qk9(prog, aq, i, i, vK9, ("v", CI[2])); sm9(prog, i, i)
        pv(prog, aq, i - 1, i, [0, 1] if i < 16 else [0, 1, 2, 3], pbufB(i - 1))
    o_fin(prog, QACC + 32, 16)
    prog.append(barrier(17, []))
    return prog

TACC = 20
TPK = 56
OWN = 172
def vU(f, Fn, u): return 208 + f * 4 + Fn * 2 + u
vL16, vL8, vFl = 88, 89, 90
vPl = [92, 93, 94]
EU = [224, 228]; E9 = 232
O9r = 0
LAND = [64, 84, 104]
sPsrc, sPpl, sExp, sFlP, sPbase, sFbase = 4, 5, 6, 7, 72, 73
sFlOff, sD5, sP5, sD6, sP6 = 74, 44, 45, 54, 55
def tacc(base, Fn, u, qt): return base + ((Fn * 2 + u) * 2 + qt) * 4
def ofrag(h, qt, F):
    return [("a", qfrag(ST0, qt, F)), ("a", qfrag(ST1, qt, F)), ("v", qfrag(QACC, qt, F)), ("v", qfrag(QACC + 32, qt, F))][h]

def tail_setup():
    o = wo_dma(2, sSlC, None)
    t = f"s_mov_b32 s{sT0}, {VB}\n"
    for f in range(4):
        t += f"""
    s_xor_b32 s3, s{sWave}, {f}
    s_lshl_b32 s4, s3, 10
    v_add_u32 v{vTmp}, s4, v{vL}
    """
        for h in range(4):
            t += f"ds_read_b128 a[{O9r+(h*4+f)*4}:{O9r+(h*4+f)*4+3}], v{vTmp} offset:{O9+h*4096}\n"
    t += f"""
    v_lshrrev_b32 v76, 8, v253            ; g
    v_lshrrev_b32 v77, 1, v76
    v_mul_u32_u24 v77, 2064, v77
    v_and_b32 v76, 1, v76
    v_mul_u32_u24 v76, 1032, v76
    v_add3_u32 v78, v76, v77, s{sT0}
    v_bfe_u32 v76, v253, 6, 2             ; r
    v_bfe_u32 v77, v253, 4, 2             ; cc
    v_lshrrev_b32 v79, 1, v76
    v_lshlrev_b32 v79, 2, v79
    v_xor_b32 v77, v77, v79
    v_lshlrev_b32 v77, 4, v77
    v_lshl_add_u32 v77, v76, 7, v77
    s_lshr_b32 s5, s{sWave}, 1
    s_lshl_b32 s5, s5, 6
    v_xor_b32 v74, s5, v77                ; Fn' = 0
    v_xor_b32 v75, 64, v74                ; Fn' = 1
    v_add_u32 v74, v74, v78
    v_add_u32 v75, v75, v78
    s_and_b32 s6, s{sWave}, 1
    s_lshl_b32 s6, s6, 3
    s_xor_b32 s7, s6, 8
    """
    for f in range(4):
        t += f"""
    s_xor_b32 s3, s{sWave}, {f}
    s_mul_i32 s3, s3, 4128
    s_add_u32 s4, s3, s6
    s_add_u32 s5, s3, s7
    v_add_u32 v{vU(f,0,0)}, s4, v74
    v_add_u32 v{vU(f,0,1)}, s5, v74
    v_add_u32 v{vU(f,1,0)}, s4, v75
    v_add_u32 v{vU(f,1,1)}, s5, v75
    """
    t += f"""
    v_mov_b32 v{vL16}, v253
    v_lshrrev_b32 v{vL8}, 1, v253
    v_add_u32 v{vL8}, 0x1000, v{vL8}
    v_cmp_eq_u32 vcc, 0, v253
    v_mov_b32 v75, s{sOOB}
    v_cndmask_b32 v{vFl}, v75, 0, vcc
    v_mov_b32 v255, s{sTag}
    v_lshrrev_b32 v74, 4, v253            ; lane
    v_and_b32 v75, 15, v74                ; m
    v_lshrrev_b32 v76, 4, v74             ; g
    v_lshrrev_b32 v77, 2, v75
    v_and_b32 v78, 1, v75
    v_lshlrev_b32 v78, 4, v78
    v_mov_b32 v79, 0x3f80
    v_lshlrev_b32 v79, v78, v79
    v_cmp_eq_u32 vcc, v76, v77
    v_cndmask_b32 v79, 0, v79, vcc
    v_and_b32 v78, 2, v75
    v_cmp_eq_u32 vcc, 0, v78
    v_cndmask_b32 v{EU[0]}, 0, v79, vcc
    v_cndmask_b32 v{EU[0]+1}, v79, 0, vcc
    v_mov_b32 v{EU[0]+2}, 0
    v_mov_b32 v{EU[0]+3}, 0
    v_mov_b32 v{EU[1]}, 0
    v_mov_b32 v{EU[1]+1}, 0
    v_mov_b32 v{EU[1]+2}, v{EU[0]}
    v_mov_b32 v{EU[1]+3}, v{EU[0]+1}
    s_lshl_b32 s3, s{sWave}, 5
    v_add_u32 v80, s3, v75
    v_lshlrev_b32 v80, 11, v80
    v_lshl_add_u32 v80, v76, 4, v80       ; (32w+m)*2048 + g*16
    s_lshr_b32 s3, s{sWave}, 1
    s_lshl_b32 s3, s3, 6
    v_add_u32 v80, s3, v80
    v_xor_b32 v81, 64, v80
    v_add_u32 v82, 0x80, v75
    v_lshlrev_b32 v82, 11, v82
    v_lshl_add_u32 v82, v76, 4, v82
    s_add_u32 s3, s3, s6
    v_add_u32 v82, s3, v82
    """
    for L in LAND: t += f"v_accvgpr_write_b32 a{L+18}, 0\nv_accvgpr_write_b32 a{L+19}, 0\n"
    for r in range(36): t += f"v_mov_b32 v{OWN+r}, 0\n"
    t += f"""
    s_mul_i32 s3, s{sJ}, 147456
    s_mul_i32 s4, s{sWave}, 4608
    s_add_u32 s{sPbase}, s3, s4
    s_lshl_b32 s3, s{sJ}, 7
    s_lshl_b32 s4, s{sWave}, 2
    s_add_u32 s{sFbase}, s3, s4
    s_lshl_b32 s3, s{sJ}, 4
    s_add_u32 s{sFlOff}, s3, s4
    s_mul_i32 s3, s{sJ}, 18432
    s_mul_i32 s4, s{sWave}, 4608
    s_add_u32 s{sOwn}, s3, s4
    {src_regs(5, sD5, sP5)}
    {src_regs(6, sD6, sP6)}
    s_mov_b32 s{sPst}, s{sOOB}
    s_mov_b32 s{sFl}, s{sOOB}
    s_mov_b32 s{sFlP}, s{sOOB}
    s_mov_b32 s{sPsrc}, s{sOOB}
    s_mov_b32 s{sPpl}, s{sOOB}
    s_mov_b32 s{sExp}, 0
    s_mov_b32 s{sTrip}, 0
    """
    return o + PS(t)

def src_regs(m, dsrc, dpl):
    return f"""
    s_add_u32 s3, s{sJ}, {(7 - m) & 7}
    s_and_b32 s3, s3, 7
    s_mul_i32 s{dsrc}, s3, 18432
    s_add_u32 s{dsrc}, s{dsrc}, s{sPbase}
    s_lshl_b32 s3, s3, 4
    s_add_u32 s{dpl}, s3, s{sFbase}
    """
def tail_next():
    return [S(x) for x in f"""s_add_u32 s{sTrip}, s{sTrip}, 1
    s_mov_b32 s{sFlP}, s{sFl}
    s_add_u32 s{sT2}, s{sJ}, s{sTrip}
    s_and_b32 s{sT2}, s{sT2}, 7
    s_mul_i32 s{sPst}, s{sT2}, 147456
    s_add_u32 s{sPst}, s{sPst}, s{sOwn}
    s_lshl_b32 s{sT2}, s{sT2}, 7
    s_add_u32 s{sFl}, s{sT2}, s{sFlOff}
    s_mov_b32 s{sSlC}, s{sSlN}
    s_add_u32 s{sSlN}, s{sSlN}, 128
    s_and_b32 s{sSlN}, s{sSlN}, 0x3ff""".split("\n")]
def tail_end():
    return PS(f"""
    s_sub_u32 s3, s{sJ}, s{sTrip}
    s_add_u32 s3, s3, 2
    s_and_b32 s3, s3, 7
    s_mul_i32 s{sPsrc}, s3, 18432
    s_add_u32 s{sPsrc}, s{sPsrc}, s{sPbase}
    s_lshl_b32 s3, s3, 4
    s_add_u32 s{sPpl}, s3, s{sFbase}
    s_cmp_ge_u32 s{sTrip}, 3
    s_cselect_b32 s{sPsrc}, s{sPsrc}, s{sOOB}
    s_cselect_b32 s{sPpl}, s{sPpl}, s{sOOB}
    s_cselect_b32 s{sExp}, s{sTag}, 0
    s_cmp_lt_u32 s{sTrip}, 7
    s_cbranch_scc1 L_trip
    """)

def op_frag(prog, aq, h, f, Fn, u, seg, accb, reads=True, mf=True, zero=True):
    pair = (h + 2) % 4; first = (h == 0 and f == 0 and zero)
    q = aq.get()
    if reads:
        for a in range(2): prog.append(dsrtr((q[0], q[1] + 2 * a), vU(f, Fn, u), pair * 2 * VS + a * 512, seg=seg))
    if mf:
        for qt in range(2):
            d = ("v", tacc(accb, Fn, u, qt))
            prog.append(mfma(d, q, ofrag(h, qt, f), 0 if first else d))
        if Fn == 0 and u == 0:
            d = ("v", accb + 32)
            prog.append(mfma(d, q, ("a", O9r + (h * 4 + f) * 4), 0 if first else d))
def op_kstep(prog, aq, h, f, seg, accb, **kw):
    for Fn in range(2):
        for u in range(2): op_frag(prog, aq, h, f, Fn, u, seg, accb, **kw)
def t_pack(prog, accb):
    for Fn in range(2):
        for u in range(2):
            for qt in range(2):
                t = tacc(accb, Fn, u, qt); d = TPK + (qt * 2 + Fn) * 4 + 2 * u
                prog.append(V(f"v_cvt_pk_bf16_f32 v{d}, v{t}, v{t+1}"))
                prog.append(V(f"v_cvt_pk_bf16_f32 v{d+1}, v{t+2}, v{t+3}"))
            if Fn == 0 and u == 0:
                prog.append(V(f"v_cvt_pk_bf16_f32 v{TPK+16}, v{accb+32}, v{accb+33}"))
                prog.append(V(f"v_cvt_pk_bf16_f32 v{TPK+17}, v{accb+34}, v{accb+35}"))
def ident(L):
    o = []
    for Fn in range(2):
        for u in range(2):
            for qt in range(2):
                d = ("v", tacc(OWN, Fn, u, qt))
                o.append(mfma(d, ("v", EU[u]), ("a", L + (qt * 2 + Fn) * 4), d))
    o.append(mfma(("v", OWN + 32), ("v", EU[0]), ("a", L + 16), ("v", OWN + 32)))
    return o
def poll(n, soff, seg, rel=None):
    return [V(f"v_add_u32 v97, s{soff}, v{vFl}"),
            vload(1, ("v", vPl[n]), 97, sF, "0", 0, "sc1", ("pl", n), seg=seg, rel=rel, hint=None if rel is None else rel + 1)]
def flag(soff, n, seg):
    return [V(f"v_add_u32 v98, s{soff}, v{vFl}"), vstore(1, ("v", 255), 98, sF, "0", 0, "sc1", ("fl", n), seg=seg, hint=1)]
def check(n, soff, sexp, seg):
    _lab[0] += 1; k = _lab[0]
    txt = f"""v_readfirstlane_b32 s3, v{vPl[n]}
s_nop 0
s_cmp_eq_u32 s3, s{sexp}
s_cbranch_scc1 L_ok{k}
s_mov_b32 s{sT1}, 0x40000
L_sp{k}:
buffer_load_dword v{vPl[n]}, v{vFl}, s[{sF}:{sF+3}], s{soff} offen sc1
s_waitcnt vmcnt(0)
v_readfirstlane_b32 s3, v{vPl[n]}
s_sub_u32 s{sT1}, s{sT1}, 1
s_cmp_eq_u32 s{sT1}, 0
s_cbranch_scc1 L_ok{k}
s_cmp_eq_u32 s3, s{sexp}
s_cbranch_scc0 L_sp{k}
L_ok{k}:"""
    return I(txt, "blob", rd=[f"v{vPl[n]}", f"s{soff}", f"s{sexp}"], wr=[f"v{vPl[n]}", "s3", f"s{sT1}", f"ok{n}"], cost=44, seg=seg, hint=0)
def pdata(n, L, soff, seg, rel0=None):
    o = [V(f"v_add_u32 v74, s{soff}, v{vL16}"), V(f"v_add_u32 v75, s{soff}, v{vL8}")]
    for c in range(5):
        kw = {} if rel0 is None else dict(rel=rel0 + 3 * c, hint=rel0 + 3 * c + 2)
        x = vload(4, ("a", L + 4 * c), 74, sP, "0", c * 1024, "sc1", ("pd", n), seg=seg, **kw) if c < 4 else \
            vload(2, ("a", L + 16), 75, sP, "0", 0, "sc1", ("pd", n), seg=seg, **kw)
        x.rd.append(f"ok{n}"); o.append(x)
    return o
def pstores(rel, segs):
    o = [V(f"v_add_u32 v76, s{sPst}, v{vL16}"), V(f"v_add_u32 v77, s{sPst}, v{vL8}")]
    for i, k in enumerate((4, 0, 2, 1, 3)):
        kw = dict(seg=segs[i], rel=rel[i], hint=rel[i] + 2)
        if k == 4:
            o.append(vstore(2, ("v", TPK + 16), 77, sP, "0", 0, "sc1", ("st", 0), **kw))
        else: o.append(vstore(4, ("v", TPK + 4 * k), 76, sP, "0", k * 1024, "sc1", ("st", 0), **kw))
    return o
def tail_trip(last):
    prog = []; aq = AQ_([('a', QC + 4 * i) for i in range(8)] + [('a', AQ + 4 * i) for i in range(8)]); aq.k = 60
    accb = OWN if last else TACC
    for h in range(4):
        nd = [("O", h)]
        if h == 0: nd.append(("st", -1))
        if h == 2: nd.append(("pd", -1))
        if h == 3: nd.append(("pl", 0))
        if last and h == 2: nd.append(("st", 0))
        prog.append(barrier(h, nd))
        if h == 0:
            prog += flag(sFlP, 0, 0)
            prog += poll(0, sPpl, 0, rel=2)
            op_kstep(prog, aq, 3, 3, None, TACC, reads=False)
            t_pack(prog, TACC)
            wd = wo_dma(3, sSlC, 0, hint0=5)
            if last: prog += wd + pstores([17, 20, 23, 26, 29], [0] * 5)
            else: prog += wd + pstores([21, 26, 31, 1, 6], [0, 0, 0, 1, 1])
        else:
            op_kstep(prog, aq, h - 1, 3, h - 1, accb)
        if h == 2:
            if last:
                prog += flag(sFl, 1, 2)
                prog += poll(1, sP5, 2, rel=3)
                prog += ident(LAND[0])
            else:
                _lab[0] += 1; k = _lab[0]; im = ident(LAND[0])
                txt = f"s_cmp_lt_u32 s{sTrip}, 4\ns_cbranch_scc1 L_ni{k}\n" + "\n".join(x.text for x in im) + f"\nL_ni{k}:"
                prog.append(I(txt, "blob", rd=R("a", LAND[0], 20) + [f"s{sTrip}"], wr=R("v", OWN, 36), cost=100, seg=2, rel=12, hint=13))
        if h == 3:
            prog.append(check(0, sPpl, sExp, 3))
            prog += pdata(0, LAND[0], sPsrc, 3, rel0=2)
            if last: prog += poll(2, sP6, 3, rel=24)
        if h >= 1 and not last: prog += wo_dma(h + 3, sSlN, h, hint0={1: 11, 2: 3, 3: 17}[h])
        for f in range(3): op_kstep(prog, aq, h, f, h, accb, zero=not last)
        if h == 3:
            if last: op_kstep(prog, aq, 3, 3, 3, accb)
            else:
                op_kstep(prog, aq, 3, 3, 3, accb, mf=False)
                prog += tail_next()
    return prog

def final():
    o = PS("s_waitcnt vmcnt(0)")
    o.append(check(1, sP5, sTag, None)); o += pdata(1, LAND[1], sD5, None)
    o.append(check(2, sP6, sTag, None)); o += pdata(2, LAND[2], sD6, None)
    o += ident(LAND[0])
    o += PS(f"""
    s_lshl_b32 s3, s{sBr}, 10
    s_add_u32 s3, s3, s{sSlC}
    s_add_u32 s4, s3, 32768
    s_waitcnt vmcnt(5)""")
    o += ident(LAND[1]) + PS("s_waitcnt vmcnt(0)") + ident(LAND[2])
    t_pack(o, OWN)
    t = f"s_and_b32 s5, s{sWave}, 1\ns_cbranch_scc0 L_nsw\n"
    for k in range(4): t += f"v_swap_b32 v{TPK+4*k}, v{TPK+4*k+2}\nv_swap_b32 v{TPK+4*k+1}, v{TPK+4*k+3}\n"
    t += "L_nsw:\n"
    for qt in range(2):
        for Fn in range(2):
            r = TPK + (qt * 2 + Fn) * 4
            t += f"buffer_store_dwordx4 v[{r}:{r+3}], v{80+Fn}, s[{sO}:{sO+3}], s{3+qt} offen\n"
    t += f"buffer_store_dwordx2 v[{TPK+16}:{TPK+17}], v82, s[{sO}:{sO+3}], s3 offen\n"
    t += f"""
    s_or_b32 s5, s{sJ}, s{sWave}
    s_cmp_eq_u32 s5, 0
    s_cselect_b32 s5, 1024, s{sOOB}
    buffer_store_dword v255, v{vFl}, s[{sF}:{sF+3}], s5 offen
    """
    return o + PS(t)

def fine(seq, lane0):
    if cfg.timing != 3: return seq
    out = []; prev = None
    for x in seq:
        out.append(x)
        if x.kind == "barrier":
            if prev is not None: out.append(P(f"v_writelane_b32 v254, s90, {lane0+prev}"))
            out.append(P("s_memtime s[90:91]")); out.append(P("s_waitcnt lgkmcnt(0)")); prev = x.seg
    out.append(P(f"v_writelane_b32 v254, s90, {lane0+prev}"))
    return out

def shift(q, d, streams):
    return [(s, n + d) if s in streams else (s, n) for (s, n) in q]

def verify_vm(seq, q, name):
    q = list(q)
    import re as _re
    for x in seq:
        if x.kind == "vmem": q.append(x.tag)
        if x.kind == "wait":
            m = _re.search(r"vmcnt\((\d+)\)", x.text)
            if m:
                n = int(m.group(1))
                if len(q) > n: q = q[len(q) - n:] if n else []
        if x.kind == "barrier":
            bad = [t for t in x.vm if t in q]
            assert not bad, f"{name}: barrier {x.seg} misses {bad} q={q}"
    return q

def generate():
    out = []
    su = pad_hazards(setup() + setup2())
    q = verify_vm(su, [], "setup")
    sp = Sched(prologue(), vm_out=q, lookahead=cfg.la, lb=cfg.lb, name="pro", pre=su); pro = sp.run()
    q = verify_vm(pro, q, "pro")
    mid = pad_hazards(stamp(1) + PS("L_round:"), pro)
    steady = []
    for i in (-3, -2, -1): steady += [("K", i + 3)] * 2 + [("V", i + 2)] * 2 + [("W", i + 3)] * 2
    sa = Sched(bodyA(), vm_out=steady, lookahead=cfg.la, lb=cfg.lb, name="A", pre=pro + mid); A = sa.run()
    endA = PS(f"""
    s_mov_b64 s[{sMsk}:{sMsk+1}], -1
    s_lshl_b32 s3, s{sRnd}, 12
    s_add_u32 s3, s3, s{sQ9w}
    s_add_u32 s{sO9}, s3, {O9}
    s_cmp_ge_u32 s{sRnd}, 1
    s_cselect_b32 s{sWj}, s{sOOB}, s{sWj}
    s_add_u32 s{sRnd}, s{sRnd}, 1
    s_cmp_lt_u32 s{sRnd}, 3
    s_cbranch_scc1 L_round
    s_add_u32 s3, s{sJ}, s{sB}
    s_add_u32 s3, s3, 1
    s_and_b32 s3, s3, 7
    s_lshl_b32 s{sSlC}, s3, 7
    s_add_u32 s{sSlN}, s{sSlC}, 128
    s_and_b32 s{sSlN}, s{sSlN}, 0x3ff
    """) + stamp(2)
    for r in range(3):
        q = verify_vm(A, q, f"A{r}"); q = shift(q, -16, "KVW")
    assert check_hazards(A[:30], A + endA) == 0
    sb = Sched(bodyB(), vm_out=steady, lookahead=cfg.la, lb=cfg.lb, name="B", pre=A + endA); B = sb.run()
    q = verify_vm(B, q, "B")
    ts = pad_hazards(stamp(3) + tail_setup() + [P("L_trip:")], B)
    q = verify_vm(ts, q, "ts")
    st_t = [("st", -1)] * 2 + [("O", 0)] * 4 + [("O", 1)] * 4 + [("pd", -1)] * 5 + [("O", 2)] * 4
    stt = Sched(tail_trip(False), vm_out=st_t, lookahead=cfg.la, lb=cfg.lb, name="T", pre=B + ts); T = stt.run()
    endT = tail_end() + stamp(4)
    for k in range(7):
        q = verify_vm(T, q, f"T{k}"); q = shift(q, -4, "O"); q = shift(q, -1, ("st", "pd", "fl", "pl"))
    assert check_hazards(T[:30], T + endT) == 0
    stl = Sched(tail_trip(True), vm_out=st_t, lookahead=cfg.la, lb=cfg.lb, name="TL", pre=T + endT); TL = stl.run()
    q = verify_vm(TL, q, "TL")
    fin = pad_hazards(stamp(5) + final() + stamp(6), TL)
    tm = []
    if cfg.timing:
        t = "s_waitcnt vmcnt(0) lgkmcnt(0)\n" + stamp(7)[0].text + "\ns_waitcnt lgkmcnt(0)\n"
        for n in range(0, 8): t += f"s_sub_u32 s{sTm+2*n}, s{sTm+2*n}, s98\nv_mov_b32 v{20+n}, s{sTm+2*n}\n"
        t += f"s_lshl_b32 s3, s2, 2\ns_add_u32 s3, s3, s{sWave}\ns_lshl_b32 s3, s3, 5\n"
        t += f"s_mov_b32 s{sF}, s100\ns_mov_b32 s{sF+1}, s101\ns_mov_b32 s{sF+2}, 0x10000\n"
        t += f"buffer_store_dwordx4 v[20:23], v{vFl}, s[{sF}:{sF+3}], s3 offen\nbuffer_store_dwordx4 v[24:27], v{vFl}, s[{sF}:{sF+3}], s3 offen offset:16\n"
        if cfg.timing == 3:
            t += f"s_lshl_b32 s3, s3, 3\ns_add_u32 s3, s3, 0x8000\ns_mov_b32 s{sF+2}, 0x80000\nv_lshrrev_b32 v75, 2, v253\nbuffer_store_dword v254, v75, s[{sF}:{sF+3}], s3 offen\n"
        tm = pad_hazards(PS(t), fin)
    stats = {n: (s.t, s.stall, s.nnop, len(s.mf), [b - a for a, b in zip(list(s.segtime.values()), list(s.segtime.values())[1:] + [s.t])]) for n, s in (("pro", sp), ("A", sa), ("B", sb), ("T", stt), ("TL", stl))}
    allc = su + fine(pro, 0) + mid + fine(A, 16) + endA + fine(B, 32) + ts + fine(T, 50) + endT + fine(TL, 54) + fin + tm + PS("L_end:\ns_endpgm")
    return allc, stats

HDR = """; Fused MHA (Q projection + attention + output projection + cross-workgroup reduce), generated by gen/gen.py
; @launch grid=(256,1,1) block=(256,1,1) lds={lds}
.amdgcn_target "amdgcn-amd-amdhsa--gfx950"
.text
.globl {n}
.p2align 8
.type {n},@function
{n}:
"""
FTR = """.section .rodata,"a"
.p2align 6
.amdhsa_kernel {n}
  .amdhsa_next_free_vgpr 512
  .amdhsa_next_free_sgpr 102
  .amdhsa_accum_offset 256
  .amdhsa_group_segment_fixed_size 0
  .amdhsa_kernarg_size 104
  .amdhsa_user_sgpr_count 2
  .amdhsa_user_sgpr_kernarg_segment_ptr 1
  .amdhsa_system_sgpr_workgroup_id_x 1
.end_amdhsa_kernel
"""
def text(code):
    return HDR.format(n=NAME, lds=LDS_TOTAL) + "\n".join(x.text for x in code) + "\n" + FTR.format(n=NAME)

if __name__ == "__main__":
    outp = sys.argv[1]
    for a in sys.argv[2:]:
        k, v = a.split("=")
        setattr(cfg, k, int(v) if v.lstrip("-").isdigit() else v.replace("+", " "))
    code, stats = generate()
    s = text(code)
    open(outp, "w").write(s)
    print("instrs", len(code), "bytes", len(s))
    for k, v in stats.items():
        if cfg.verbose: print("   segs", v[4])
        print(k, "est cycles", v[0], "stall", v[1], "nops", v[2], "mfma", v[3], "ideal", v[3] * 16)
```

```python
import re

def R(p, a, n=1):
    return [f"{p}{i}" for i in range(a, a + n)]

def rng(p, a, n):
    return f"{p}{a}" if n == 1 else f"{p}[{a}:{a+n-1}]"

class I:
    __slots__ = ("text", "kind", "rd", "wr", "rdC", "seg", "tag", "dl", "cost", "idx", "preds", "succs",
                 "pos", "t", "lq", "anchor", "hint", "vm", "perm", "wide", "after", "cexact", "rel", "est")
    def __init__(self, text, kind, rd=(), wr=(), rdC=(), seg=None, tag=None, cost=None, hint=None,
                 vm=None, perm=False, wide=False, rel=None):
        self.text = text; self.kind = kind
        self.rd = list(rd); self.wr = list(wr); self.rdC = list(rdC)
        self.seg = seg
        self.tag = tag
        self.hint = hint
        self.vm = vm
        self.perm = perm; self.wide = wide
        self.cost = cost if cost is not None else {"trans": 8, "dsw": 16}.get(kind, 4)
        self.dl = None; self.preds = []; self.succs = []; self.pos = None; self.t = None
        self.after = []; self.rel = rel
    def __repr__(self):
        return self.text

def mfma(d, a, b, c):
    ct = "0" if c == 0 else rng(c[0], c[1], 4)
    rc = [] if c == 0 else R(c[0], c[1], 4)
    x = I(f"v_mfma_f32_16x16x32_bf16 {rng(d[0],d[1],4)}, {rng(a[0],a[1],4)}, {rng(b[0],b[1],4)}, {ct}",
          "mfma", rd=R(a[0], a[1], 4) + R(b[0], b[1], 4) + rc, wr=R(d[0], d[1], 4), rdC=rc)
    return x

_reg = re.compile(r"\b([vas])(\d+)\b|\b([vas])\[(\d+):(\d+)\]|\b(vcc|m0|exec|scc)\b")
def regs_of(s):
    out = []
    for m in _reg.finditer(s):
        if m.group(1): out.append(m.group(1) + m.group(2))
        elif m.group(3): out += R(m.group(3), int(m.group(4)), int(m.group(5)) - int(m.group(4)) + 1)
        else: out.append(m.group(6))
    return out

TRANS = ("v_exp_f32", "v_rcp_f32", "v_log_f32", "v_rsq_f32", "v_sqrt_f32")
def V(text, **kw):
    op, rest = text.split(None, 1)
    ops = [o.strip() for o in rest.split(",")]
    wr = regs_of(ops[0]); rd = regs_of(",".join(ops[1:]))
    perm = op.startswith("v_permlane")
    if perm or op.startswith("v_swap"):
        wr = regs_of(ops[0]) + regs_of(ops[1]); rd = list(wr)
    if op.startswith("v_fmac") or op.startswith("v_dot2c"): rd += wr
    return I(text, "trans" if op in TRANS else "valu", rd=rd, wr=wr, perm=perm, **kw)

def S(text, **kw):
    op, rest = text.split(None, 1)
    ops = [o.strip() for o in rest.split(",")]
    if op.startswith("s_cmp"):
        wr = ["scc"]; rd = regs_of(rest)
    else:
        wr = regs_of(ops[0]); rd = regs_of(",".join(ops[1:]))
        assert not op.startswith(("s_cselect", "s_addc", "s_subb")), "scc not tracked"
    return I(text, "salu", rd=rd, wr=wr, **kw)

def dsr128(d, addr, off, seg=None, **kw):
    return I(f"ds_read_b128 {rng(d[0],d[1],4)}, v{addr} offset:{off}", "dsr", rd=[f"v{addr}"], wr=R(d[0], d[1], 4), seg=seg, tag="b", **kw)
def dsrtr(d, addr, off, seg=None, **kw):
    return I(f"ds_read_b64_tr_b16 {rng(d[0],d[1],2)}, v{addr} offset:{off}", "dsr", rd=[f"v{addr}"], wr=R(d[0], d[1], 2), seg=seg, tag="t", **kw)
def dsw(n, addr, src, off, seg=None, **kw):
    return I(f"ds_write_b{32*n} v{addr}, {rng(src[0],src[1],n)} offset:{off}", "dsw", rd=[f"v{addr}"] + R(src[0], src[1], n), seg=seg, **kw)
def dma(voff, srd, soff, off, flags, seg, tag, **kw):
    so = soff if isinstance(soff, str) else str(soff)
    o = f" offset:{off}" if off else ""
    f = f" {flags}" if flags else ""
    return I(f"buffer_load_dwordx4 v{voff}, s[{srd}:{srd+3}], {so} offen{o}{f} lds", "vmem",
             rd=[f"v{voff}", "m0"] + R("s", srd, 4) + regs_of(so), seg=seg, tag=tag, **kw)
def vload(n, d, voff, srd, soff, off, flags, tag, seg=None, **kw):
    so = soff if isinstance(soff, str) else str(soff)
    o = f" offset:{off}" if off else ""
    f = f" {flags}" if flags else ""
    nm = {1: "dword", 2: "dwordx2", 4: "dwordx4"}[n]
    return I(f"buffer_load_{nm} {rng(d[0],d[1],n)}, v{voff}, s[{srd}:{srd+3}], {so} offen{o}{f}", "vmem",
             rd=[f"v{voff}"] + R("s", srd, 4) + regs_of(so), wr=R(d[0], d[1], n), seg=seg, tag=tag, **kw)
def vstore(n, src, voff, srd, soff, off, flags, tag, seg=None, **kw):
    so = soff if isinstance(soff, str) else str(soff)
    o = f" offset:{off}" if off else ""
    f = f" {flags}" if flags else ""
    nm = {1: "dword", 2: "dwordx2", 4: "dwordx4"}[n]
    return I(f"buffer_store_{nm} {rng(src[0],src[1],n)}, v{voff}, s[{srd}:{srd+3}], {so} offen{o}{f}", "vmem",
             rd=[f"v{voff}"] + R("s", srd, 4) + regs_of(so) + R(src[0], src[1], n), seg=seg, tag=tag, wide=(n == 4), **kw)
def barrier(seg, need):
    return I("s_barrier", "barrier", seg=seg, vm=list(need))
def vmw(need, seg, rel=None):
    return I("s_waitcnt", "vmw", seg=seg, vm=list(need), rel=rel, hint=None if rel is None else rel + 1)
def raw(text, kind="salu", rd=(), wr=(), **kw):
    return I(text, kind, rd=rd, wr=wr, **kw)

def need_states(p, c):
    n = 0
    pw = set(p.wr)
    if p.kind in ("valu", "trans", "blob"):
        if c.kind == "mfma" and pw & set(c.rd): n = max(n, 2)
        if c.perm and pw & set(c.rd): n = max(n, 2)
        if p.kind == "trans" and c.kind in ("valu", "blob") and pw & set(c.rd): n = max(n, 1)
        sw = {r for r in pw if r[0] == "s" or r == "vcc"}
        if sw:
            if c.kind == "vmem" and sw & set(c.rd): n = max(n, 5)
            if c.kind in ("valu", "trans") and sw & set(c.rd): n = max(n, 2)
            if c.kind in ("salu", "branch") and sw & set(c.rd): n = max(n, 1)
        if c.text.startswith(("v_readfirstlane", "v_readlane")) and pw & set(c.rd): n = max(n, 1)
    if p.kind == "mfma":
        if c.kind == "mfma":
            ab = set(c.rd) - set(c.rdC)
            if pw & ab: n = max(n, 8)
            if pw & set(c.rdC) and list(p.wr) != list(c.rdC): n = max(n, 6)
        elif c.kind in ("valu", "trans", "blob", "dsr", "dsw", "vmem"):
            if pw & (set(c.rd) | set(c.wr)): n = max(n, 8)
            if c.kind in ("valu", "trans", "blob") and set(p.rdC) & set(c.wr): n = max(n, 3)
    if p.kind == "salu" and "m0" in pw and c.kind == "vmem" and "m0" in c.rd: n = max(n, 1)
    if p.kind == "vmem" and p.wide and c.kind in ("valu", "trans", "blob") and set(p.rd) & set(c.wr): n = max(n, 2)
    if p.kind == "salu" and "exec" in pw and c.perm: n = max(n, 0)
    return n

def states_of(x):
    if x.kind == "nop": return x.cost
    if x.kind == "label": return 0
    if x.kind == "blob": return 1
    return 1

def pad_hazards(seq, pre=()):
    out = []; ctx = list(pre)[-24:]
    for c in seq:
        need = 0; d = 0
        for p in reversed(ctx):
            if d >= 12: break
            k = need_states(p, c)
            if k - d > need: need = k - d
            d += states_of(p)
        if need > 0:
            nop = I(f"s_nop {need-1}", "nop", cost=need)
            out.append(nop); ctx.append(nop)
        out.append(c); ctx.append(c)
        if len(ctx) > 40: ctx = ctx[-24:]
    return out

def check_hazards(seq, pre=()):
    n = len(pad_hazards(seq, pre)) - len(seq)
    return n

DS_LAT = 84
class Sched:
    def __init__(self, prog, vm_out=(), lookahead=6, name="", pre=(), lb=5, sp_e=1.0, sp_v=0.6):
        self.prog = prog; self.vmq = list(vm_out); self.la = lookahead; self.name = name; self.pre = list(pre); self.lb = lb; self.sp_e = sp_e; self.sp_v = sp_v; self.late = 1.5; self.segtime = {}
    def build(self):
        lastw = {}; readers = {}
        segbar = {}; segops = {}
        prevbar = None; lastvm = None; lastmf = None; lastds = None
        for x in self.prog:
            x.preds = []; x.succs = []
        def edge(a, b):
            if a is not b and a not in b.preds:
                b.preds.append(a); a.succs.append(b)
        for x in self.prog:
            for r in x.rd:
                if r in lastw: edge(lastw[r], x)
            for r in x.wr:
                if r in lastw: edge(lastw[r], x)
                for y in readers.get(r, ()): edge(y, x)
            for r in x.rd: readers.setdefault(r, []).append(x)
            for r in x.wr:
                lastw[r] = x; readers[r] = []
            for a in x.after: edge(a, x)
            if x.kind == "barrier":
                segbar[x.seg] = x
                if prevbar is not None: edge(prevbar, x)
                prevbar = x
            if x.kind in ("vmem", "vmw"):
                if lastvm is not None: edge(lastvm, x)
                lastvm = x
        bars = sorted(segbar)
        for x in self.prog:
            if x.kind != "barrier" and x.seg is not None:
                if x.seg in segbar: edge(segbar[x.seg], x)
                if x.seg + 1 in segbar: edge(x, segbar[x.seg + 1])
        self.mf = [x for x in self.prog if x.kind == "mfma"]
        for i, m in enumerate(self.mf): m.idx = i
        n = 0; self.segstart = {}
        for x in self.prog:
            if x.kind == "mfma": n += 1
            if x.kind == "barrier":
                x.anchor = n; self.segstart[x.seg] = n
        END = len(self.mf) + 2
        order = self._topo()
        for x in order:
            e = 0.0
            if x.kind == "mfma": x.est = x.idx; continue
            if x.kind == "barrier": x.est = x.anchor; continue
            for p in x.preds:
                g = 0.0
                if p.kind == "mfma": g = 1 + need_states(p, x) / 3.0
                elif p.kind == "dsr" and set(p.wr) & set(x.rd): g = 5
                e = max(e, p.est + g)
            if x.rel is not None and x.seg in self.segstart: e = max(e, self.segstart[x.seg] + x.rel)
            x.est = e
        def base_dl(x):
            d = END
            for y in x.succs:
                raw_dep = bool(set(x.wr) & set(y.rd))
                if x.kind == "dsr":
                    g = self.la if (raw_dep and y.kind != "barrier") else (self.lb if y.kind == "barrier" else 0.1)
                elif x.kind == "dsw": g = 4 if y.kind == "barrier" else 0.1
                elif x.kind == "trans": g = 0.6
                else: g = 0.3
                d = min(d, y.dl - g)
            if not x.succs and x.kind == "dsr": d = len(self.mf) - self.lb
            if x.hint is not None and x.seg in self.segstart:
                d = min(d, self.segstart[x.seg] + x.hint)
            return d
        import heapq
        for x in self.prog:
            x.dl = None
            if x.kind == "mfma": x.dl = x.idx
            if x.kind == "barrier": x.dl = x.anchor
        left = {id(x): sum(1 for y in x.succs if y.kind not in ("mfma", "barrier")) for x in self.prog}
        heap = []; n = 0
        for x in self.prog:
            if x.dl is None and left[id(x)] == 0:
                heapq.heappush(heap, (-base_dl(x), n, x)); n += 1
        last = {}
        segsp = {}
        for sg in self.segstart:
            nds = sum(1 for x in self.prog if x.kind in ("dsr", "dsw") and x.seg == sg)
            end = self.segstart.get(sg + 1, len(self.mf))
            if nds: segsp[sg] = min(1.0, max(0.3, (end - self.segstart[sg] - self.lb + 0.5) / nds))
        space = {"dsr": 1.0, "dsw": 1.0, "trans": self.sp_e, "valu": self.sp_v}
        while heap:
            nd, _, x = heapq.heappop(heap); d = -nd
            cls = "dsr" if x.kind == "dsw" else x.kind
            if cls in space and cls in last:
                sp = space[cls]
                if cls == "dsr" and x.seg in segsp: sp = segsp[x.seg]
                d2 = min(d, last[cls] - sp)
                d = max(d2, min(d, x.est))
            if cls in space: last[cls] = d
            x.dl = d
            for p in x.preds:
                if p.kind in ("mfma", "barrier"): continue
                left[id(p)] -= 1
                if left[id(p)] == 0:
                    heapq.heappush(heap, (-base_dl(p), n, p)); n += 1
    def _topo(self):
        indeg = {id(x): len(x.preds) for x in self.prog}
        out = []; st = [x for x in self.prog if not x.preds]
        while st:
            x = st.pop(); out.append(x)
            for y in x.succs:
                indeg[id(y)] -= 1
                if indeg[id(y)] == 0: st.append(y)
        assert len(out) == len(self.prog), f"cycle in deps ({self.name})"
        return out
    def emit(self, x):
        x.pos = self.nst; x.t = self.t
        self.out.append(x); self.nst += states_of(x); self.done.add(id(x))
        if x.kind in ("dsr", "dsw"):
            self.lq.append(x)
        if x.kind == "vmem": self.vmq.append(x.tag)
        for y in x.succs:
            self.cnt[id(y)] -= 1
            if self.cnt[id(y)] == 0 and y.kind not in ("mfma",): self.ready.append(y)
    def lgkm_need(self, x):
        touch = set(x.rd) | set(x.wr); last = -1
        for i, y in enumerate(self.lq):
            if y.kind == "dsr" and set(y.wr) & touch: last = i
        if last < 0: return None
        return len(self.lq) - 1 - last
    def emit_wait(self, n, vm=None):
        n = min(n, 15)
        keep = self.lq[len(self.lq) - n:] if n > 0 else []
        gone = self.lq[:len(self.lq) - n] if n > 0 else self.lq
        tneed = max([y.t + DS_LAT for y in gone if y.kind == "dsr"] + [y.t + 64 for y in gone if y.kind == "dsw"] + [0])
        w = I(f"s_waitcnt lgkmcnt({n})" + (f" vmcnt({vm})" if vm is not None else ""), "wait")
        w.pos = self.nst; w.t = self.t; self.out.append(w); self.nst += 1
        self.lq = keep
        if tneed > self.t:
            self.stall += tneed - self.t; self.t = tneed
    def states_ok(self, x):
        for p in x.preds:
            k = need_states(p, x)
            if k and self.nst - p.pos - states_of(p) < k: return False
        return True
    def data_ok(self, x):
        n = self.lgkm_need(x)
        if n is None: return True
        y = self.lq[len(self.lq) - 1 - n]
        return y.t + DS_LAT <= self.t
    def issue_filler(self, x):
        if x in self.ready: self.ready.remove(x)
        if x.kind == "barrier":
            need = set(x.vm); last = -1
            for i, tg in enumerate(self.vmq):
                if tg in need: last = i
            N = len(self.vmq) - 1 - last
            x.lq = N; self.segtime[x.seg] = self.t
            self.emit_wait(0, vm=N if last >= 0 else None)
            if last >= 0: self.vmq = self.vmq[last + 1:]
            self.t += 4; self.emit(x); self.t += 12; self.prev = "barrier"; return
        if x.kind == "vmw":
            need = set(x.vm); last = -1
            for i, tg in enumerate(self.vmq):
                if tg in need: last = i
            x.text = f"s_waitcnt vmcnt({len(self.vmq) - 1 - last})"
            if last >= 0: self.vmq = self.vmq[last + 1:]
            self.emit(x); self.t += 4; return
        n = self.lgkm_need(x)
        if n is not None:
            self.emit_wait(n); self.t += 4
        c = self.cost_now(x)
        self.emit(x); self.t += c; self.prev = x.kind
    def cost_now(self, x):
        c = x.cost
        if x.kind in ("dsr", "dsw", "vmem"):
            if self.prev in ("valu", "trans", "blob"): c += 8
            elif x.kind != "vmem" and self.prev in ("dsr", "dsw", "vmem"): c += 4
        return c
    def force(self, x):
        for p in sorted(x.preds, key=lambda q: (q.dl if q.dl is not None else 0)):
            if id(p) not in self.done:
                assert p.kind != "mfma", f"order conflict: {x} needs later mfma {p} ({self.name})"
                self.force(p); self.issue_filler(p)
    def run(self):
        self.build()
        self.out = []; self.done = set(); self.lq = []; self.nst = 0; self.t = 0; self.stall = 0; self.prev = None
        self.cnt = {id(x): len(x.preds) for x in self.prog}
        self.ready = [x for x in self.prog if not x.preds and x.kind != "mfma"]
        pipe = 0
        bars = [x for x in self.prog if x.kind == "barrier"]
        def run_barriers(k):
            for b in bars:
                if id(b) not in self.done and b.anchor <= k:
                    self.force(b); self.issue_filler(b)
        self.segt = {}
        def fill(k, t_end, first):
            while True:
                cand = [x for x in self.ready if x.kind != "barrier" and self.states_ok(x)]
                cand = [x for x in cand if self.data_ok(x) or x.dl <= k - 2]
                cand = [x for x in cand if x.rel is None or x.seg not in self.segstart or k >= self.segstart[x.seg] + x.rel]
                if not cand: return
                cand.sort(key=lambda x: x.dl)
                room = t_end - self.t
                def cst(x): return self.cost_now(x) + (4 if self.lgkm_need(x) is not None else 0)
                pick = None
                fresh = self.prev not in ("valu", "trans", "blob", "dsr", "dsw", "vmem")
                urgent = [x for x in cand if x.dl <= k + 0.5]
                if room <= -4: urgent = [x for x in urgent if x.dl <= k - self.late]
                if urgent:
                    pick = urgent[0]
                    if fresh or self.prev == "dsr":
                        for x in urgent:
                            if (x.kind == "dsr" and fresh) or x.kind == "vmem": pick = x; break
                        if fresh:
                            for x in urgent:
                                if x.kind == "dsr": pick = x; break
                else:
                    for x in cand:
                        if cst(x) <= room: pick = x; break
                if pick is None: return
                if pick.kind in ("valu", "salu", "vmem") and fresh:
                    for x in cand:
                        if x.kind == "dsr" and cst(x) + pick.cost <= room: pick = x; break
                if pick.kind in ("valu", "salu") and (fresh or self.prev == "dsr") :
                    for x in cand:
                        if x.kind == "vmem" and cst(x) + pick.cost <= room: pick = x; break
                self.issue_filler(pick)
        run_barriers(0)
        for k, m in enumerate(self.mf):
            self.force(m)
            n = self.lgkm_need(m)
            if n is not None:
                self.emit_wait(n); self.t += 4 if self.prev not in ("valu", "trans") else 8
            short = 0
            for p in m.preds:
                q = need_states(p, m) - (self.nst - p.pos - states_of(p))
                short = max(short, q)
            if short > 0: self.t += 4 * short
            if pipe > self.t: self.t = pipe
            t0 = self.t
            self.emit(m); pipe = t0 + 16; self.prev = "mfma"
            self.t = t0 + 4
            used = False
            if k + 1 < len(self.mf):
                nx = self.mf[k + 1]
                if all(id(p) in self.done for p in nx.preds if p.kind == "dsr"):
                    n = self.lgkm_need(nx)
                    if n is not None:
                        self.emit_wait(n); used = True
            pend = [b for b in bars if id(b) not in self.done and b.anchor <= k + 1]
            if pend:
                self.t = max(self.t, t0 + 4)
                run_barriers(k + 1)
                self.prev = "mfma" if self.prev == "barrier" else self.prev
                fill(k + 1, max(pipe, self.t + 8), False)
                continue
            if not used:
                sal = [x for x in self.ready if x.kind in ("salu", "branch") and self.states_ok(x)]
                if sal:
                    sal.sort(key=lambda x: x.dl); x = sal[0]; self.ready.remove(x); self.emit(x)
            self.t = max(self.t, t0 + 8)
            fill(k + 1, pipe, True)
        run_barriers(10**9)
        while True:
            rest = [x for x in self.prog if id(x) not in self.done]
            if not rest: break
            cand = [x for x in self.ready if self.states_ok(x) and self.data_ok(x)] or list(self.ready)
            cand.sort(key=lambda x: (x.dl, self.prog.index(x)))
            self.issue_filler(cand[0])
        self.t = max(self.t, pipe)
        res = pad_hazards(self.out, self.pre)
        self.nnop = len(res) - len(self.out)
        return res
```

```python
import sys, math, struct
from sched import *

NAME = "concat_heads__mha_block_cached__mha_block_cached__near_ridge_kernel"

class Cfg:
    kvf = "nt"
    wqf = ""
    xf = ""
    wof = ""
    la = 6
    rot = 1
    dsp = 4
    kpre = 7
    mpf = 0
    mp0 = 5
    krot = 0
    tl = '12,30,26,16'
    g0 = 5
    outf = 'nt'
    dpair = 4
    qkchain = 0
    lnh = 1
    warm = 0
    pada = 0
    padb = 0
    hackk = 0
    wcompact = 0
    warm0 = 0
    verbose = 0
    lb = 5
    dbg = 0
    timing = 0
    cpf = 1
    cpff = ''
    nomem = 0
cfg = Cfg()

KB = 0; VB = 32768; VS = 8256; WB = VB + 4 * VS; MB = WB + 4 * VS
X9 = 0; O9 = 16640; Q9 = O9 + 16384; P9 = Q9 + 4096
XS = MB + O9
DUM = XS + 32768
MXA = DUM + 1024
VOTE = MXA + 12288; LDS_TOTAL = VOTE + 64
WOFF = WB - VB
sK, sV, sW, sX, sP, sF, sO, sWo = 8, 12, 16, 20, 24, 28, 32, 36
sWave, sM0K, sM0V, sKV, sWA, sWB_, sWt, sRnd, sC, sThr = 40, 41, 42, 43, 44, 45, 46, 47, 48, 49
sOvf, sMsk = 50, 52
sO9, sOff9, sQ9w, sTag, sJ, sB, sBr = 54, 55, 56, 57, 58, 59, 60
sT0, sT1, sT2, sT3 = 61, 62, 63, 64
sSlC, sSlN, sPst, sFl, sTrip, sOwn = 65, 66, 67, 68, 69, 70
sM0Vs = 71
sMx = 70
sOo = [6, 7]
s8k, sNeg = 4, 5
vPF = [254, 255]; sPFq = 16; sPFo = 36
sMode = 97
sWj = 45; sWj2 = 44; sWn = 61; sWr = 62; sRx = 69; sRx9 = 68; sWd = 67
sR8 = [72, 73, 74]
sOOB = 75
sCP = 3 + 61
sTm = 76
sDbg = 96
sCode = 92
sCoff = 5
vK = [0, 1, 2, 3]; vK9 = [4, 5]; vT = [6, 7, 8, 9]; vL = 10; vP9w = 11; vdK = 12; vdV = 13; vdW = 14; vTmp = 15
ONES = 16; CI = [20, 24, 28]; LA = [32, 36, 40]
SS = 44; S9 = 60; PP = 64; P9pk = 72; vt0, vt1 = 74, 75; B9x = 76; B9p = 80; Q9r = 84
QACC = 100; OACC = 172
vt2, vt3, vt4, vt5 = 244, 245, 246, 247
RC = [248, 249, 250]
PALT = 164
vA = 255
vAT = [95, 96]
def St(u, qt): return SS + (u * 2 + qt) * 4
def acc(base, F, u, qt): return base + ((F * 2 + u) * 2 + qt) * 4
def acc9(base, u): return base + 64 + u * 4
def xa(qt, ks): return (qt * 16 + ks) * 4
QC = 128; ST0 = 160; ST1 = 192; AQ = 224; NQ = 8
def qfrag(base, qt, F): return base + (qt * 4 + F) * 4

SCALE = math.log2(math.e) / math.sqrt(128.0)
def f2u(f): return struct.unpack("<I", struct.pack("<f", f))[0]

def P(text):
    text = text.strip()
    if text.endswith(":"): return I(text, "label")
    op = text.split()[0]
    if op.startswith("v_mfma"):
        ops = [o.strip() for o in text.split(None, 1)[1].split(",")]
        rc = regs_of(ops[3])
        return I(text, "mfma", rd=regs_of(ops[1]) + regs_of(ops[2]) + rc, wr=regs_of(ops[0]), rdC=rc)
    if op.startswith("v_"):
        x = V(text)
        if op.startswith(("v_add_co", "v_addc")): x.wr += ["vcc"]
        return x
    if op.startswith("buffer_") or op.startswith("global_"):
        r = regs_of(text.split(None, 1)[1])
        x = I(text, "vmem", rd=r + (["m0"] if text.endswith("lds") else []), wide=("store_dwordx4" in op))
        if "load" in op and not text.endswith("lds"):
            x.wr = regs_of(text.split(None, 1)[1].split(",")[0])
        return x
    if op.startswith("ds_"):
        r = regs_of(text.split(None, 1)[1])
        return I(text, "dsr" if "read" in op else "dsw", rd=r, wr=regs_of(text.split(None, 1)[1].split(",")[0]) if "read" in op else [])
    if op.startswith("s_nop"): return I(text, "nop", cost=int(text.split()[1]) + 1)
    if op in ("s_waitcnt", "s_barrier", "s_endpgm", "s_sleep"): return I(text, "wait")
    if op.startswith(("s_cbranch", "s_branch")): return I(text, "branch", rd=["vcc"] if "vcc" in op else [])
    parts = text.split(None, 1)
    ops = [o.strip() for o in parts[1].split(",")]
    if op.startswith("s_cmp"): return I(text, "salu", rd=regs_of(parts[1]))
    return I(text, "salu", rd=regs_of(",".join(ops[1:])), wr=regs_of(ops[0]))
def PS(block): return [P(l) for l in (x.split(";")[0].strip() for x in block.split("\n")) if l]

class AQ_:
    def __init__(self, quads=None):
        self.k = 0; self.q = quads or [("a", AQ + 4 * i) for i in range(NQ)]
    def get(self):
        q = self.q[self.k % len(self.q)]; self.k += 1; return q

def stamp(n):
    if not cfg.timing: return []
    r = sTm + 2 * n if n < 8 else 98
    return [P(f"{'s_memrealtime' if cfg.timing in (1, 4, 5) else 's_memtime'} s[{r}:{r+1}]")]

def setup():
    cp = f"""
    s_getpc_b64 s[{sCode}:{sCode+1}]
    L_pc:
    s_sub_u32 s{sCode}, s{sCode}, L_pc-{NAME}
    s_subb_u32 s{sCode+1}, s{sCode+1}, 0
    s_mov_b32 s{sCode+2}, L_end-{NAME}+4
    s_mov_b32 s{sCode+3}, 0x20000
    s_lshl_b32 s4, s4, 2
    s_add_u32 s4, s4, s{sWave}
    s_and_b32 s4, s4, 127
    s_lshl_b32 s{sCP}, s4, 10
    s_mov_b32 m0, {DUM}
    s_nop 0
    buffer_load_dwordx4 v253, s[{sCode}:{sCode+3}], s{sCP} offen {cfg.cpff} lds
    """ if cfg.cpf else ""
    lh = cfg.lnh
    mp = f"""
    s_and_b32 s3, s3, 3
    s_and_b32 s5, s3, {(8 >> lh) - 1}
    s_lshl_b32 s5, s5, {lh}
    s_and_b32 s6, s4, {(1 << lh) - 1}
    s_add_u32 s{sJ}, s5, s6
    s_lshr_b32 s3, s3, {3 - lh}
    s_lshl_b32 s3, s3, {5 - lh}
    s_lshr_b32 s6, s4, {lh}
    s_add_u32 s{sB}, s3, s6
    """
    t = f"""
    s_cmp_ge_u32 s2, 256
    s_cbranch_scc1 L_end
    s_mov_b32 s{sMode}, 0
    L_restart:
    s_load_dwordx8 s[44:51], s[0:1], 0
    s_load_dwordx4 s[52:55], s[0:1], 32
    s_load_dwordx8 s[76:83], s[0:1], 48
    s_load_dwordx2 s[84:85], s[0:1], 80
    s_load_dwordx2 s[88:89], s[0:1], 96
    
    {stamp(8)[0].text if cfg.timing else ''}
    v_lshrrev_b32 v15, 6, v0
    v_and_b32 v74, 63, v0                 ; lane
    v_readfirstlane_b32 s{sWave}, v15
    v_lshlrev_b32 v253, 4, v74
    s_and_b32 s3, s2, 7                   ; xcd
    s_lshr_b32 s4, s2, 3                  ; idx
    s_lshr_b32 s{sBr}, s3, 2
    {mp}
    {cp}
    ; ---- DMA lane constants: r8 = l>>3 (v75), p = l&7 (v76)
    v_lshrrev_b32 v75, 3, v74
    v_and_b32 v76, 7, v74
    v_bfe_u32 v77, v75, 1, 1              ; (r8>>1)&1
    v_lshlrev_b32 v78, 2, v77
    v_xor_b32 v78, v78, v76
    v_lshlrev_b32 v78, 4, v78             ; (p ^ sV)*16
    s_lshl_b32 s3, s{sWave}, 3
    v_add_u32 v79, s3, v75                ; 8w + r8
    v_lshl_add_u32 v{vdW}, v79, 13, v78
    v_lshl_add_u32 v{vdV}, v79, 8, v78
    s_and_b32 s3, s{sJ}, {(1 << lh) - 1}
    s_lshl_b32 s3, s3, {3 - lh}
    s_add_u32 s3, s3, s{sB}
    s_and_b32 s3, s3, {7 if cfg.krot else 0}
    s_lshl_b32 s{sRx}, s3, 7
    s_lshl_b32 s{sWr}, s3, 19
    s_mov_b32 s{sWn}, {(-15*262144) & 0xffffffff:#x}
    s_lshl_b32 s3, s{sJ}, 10
    s_add_u32 s3, s3, s{sWr}
    v_add_u32 v{vdW}, s3, v{vdW}
    s_lshl_b32 s3, s{sWave}, 1
    v_or_b32 v77, s3, v77
    v_xor_b32 v77, v77, v76
    v_lshlrev_b32 v77, 4, v77
    v_lshl_add_u32 v{vdK}, v79, 8, v77
    ; x staging voffsets v80..v83 (row groups 0..3)
    v_lshrrev_b32 v77, 1, v75
    v_xor_b32 v77, v77, v76
    v_lshlrev_b32 v77, 4, v77
    s_lshl_b32 s3, s{sWave}, 5
    v_add_u32 v80, s3, v75
    v_lshl_add_u32 v80, v80, 10, v77
    v_xor_b32 v81, 64, v80
    v_add_u32 v81, 0x2000, v81
    v_add_u32 v82, 0x4000, v80
    v_add_u32 v83, 0x4000, v81
    v_lshl_add_u32 v89, v75, 10, v77
    s_and_b32 s4, s{sWave}, 1
    s_lshl_b32 s3, s4, 6
    v_xor_b32 v89, s3, v89
    s_lshl_b32 s3, s4, 13
    s_lshr_b32 s4, s{sWave}, 1
    s_lshl_b32 s4, s4, 7
    s_add_u32 s{sRx9}, s{sRx}, s4
    s_add_u32 s3, s3, 0x20000
    v_add_u32 v89, s3, v89
    v_and_b32 v94, 15, v74                ; m
    v_lshrrev_b32 v84, 4, v74             ; g
    s_lshl_b32 s{sM0K}, s{sWave}, 10
    s_mov_b32 s{sQ9w}, s{sM0K}
    s_lshr_b32 s3, s{sWave}, 1
    s_and_b32 s4, s{sWave}, 1
    s_mul_i32 s5, s3, 2064
    s_add_u32 s5, s5, {VB}
    s_mul_i32 s6, s4, 1032
    s_add_u32 s{sM0V}, s5, s6
    s_mul_i32 s6, s4, 1040
    s_add_u32 s{sM0Vs}, s5, s6
    s_lshl_b32 s{sMx}, s{sWave}, 13
    s_add_u32 s{sMx}, s{sMx}, {XS}        ; extra staging area, 8 KiB per wave
    s_mov_b32 s{sW+2}, {0 if cfg.nomem & 2 else 0x400000}
    s_mov_b32 s{sW+3}, 0x20000
    s_mov_b32 s{sX+2}, {0 if cfg.nomem & 16 else 147456}
    s_mov_b32 s{sX+3}, 0x20000
    s_mul_i32 s4, s{sB}, 147456
    s_cmp_eq_u32 s{sBr}, 0
    s_waitcnt lgkmcnt(0)
    s_cselect_b64 s[44:45], s[44:45], s[54:55]
    s_cselect_b64 s[46:47], s[46:47], s[76:77]
    s_cselect_b64 s[48:49], s[48:49], s[78:79]
    s_cselect_b64 s[{sW}:{sW+1}], s[50:51], s[80:81]
    s_cselect_b64 s[52:53], s[52:53], s[82:83]
    s_add_u32 s{sX}, s44, s4
    s_addc_u32 s{sX+1}, s45, 0
    """
    return PS(t)

def setup_srd():
    return PS(f"""
    s_mov_b32 s{sK+2}, {0 if cfg.nomem & 1 else 0x80000}
    s_mov_b32 s{sK+3}, 0x20000
    s_mov_b32 s{sV+2}, {0 if cfg.nomem & 1 else 0x80000}
    s_mov_b32 s{sV+3}, 0x20000
    s_mov_b32 s{sP+2}, {0 if cfg.nomem & 8 else 1179648}
    s_mov_b32 s{sP+3}, 0x20000
    s_mov_b32 s{sF+2}, 2048
    s_mov_b32 s{sF+3}, 0x20000
    s_mov_b32 s{sO+2}, 294912
    s_mov_b32 s{sO+3}, 0x20000
    s_mov_b32 s{sWo+2}, {0 if cfg.nomem & 4 else 0x80000}
    s_mov_b32 s{sWo+3}, 0x20000
    s_lshl_b32 s3, s{sB}, 3
    s_add_u32 s3, s3, s{sJ}
    s_lshl_b32 s3, s3, 19                 ; (b*32+4j)*131072
    s_add_u32 s{sK}, s46, s3
    s_addc_u32 s{sK+1}, s47, 0
    s_add_u32 s{sV}, s48, s3
    s_addc_u32 s{sV+1}, s49, 0
    s_lshl_b32 s5, s{sJ}, 19
    s_add_u32 s{sWo}, s52, s5
    s_addc_u32 s{sWo+1}, s53, 0
    s_mul_i32 s5, s{sB}, 294912
    s_add_u32 s{sO}, s84, s5
    s_addc_u32 s{sO+1}, s85, 0
    s_lshl_b32 s6, s{sBr}, 4
    s_add_u32 s6, s6, s{sB}               ; cluster
    s_mul_i32 s7, s6, 1179648
    s_add_u32 s{sP}, s88, s7
    s_addc_u32 s{sP+1}, s89, 0
    s_lshl_b32 s6, s6, 11
    s_add_u32 s6, s6, 0x2400000
    s_add_u32 s{sF}, s88, s6
    s_addc_u32 s{sF+1}, s89, 0
    s_add_u32 s100, s88, 0x2500000
    s_addc_u32 s101, s89, 0
    s_load_dword s{sTag}, s[{sF}:{sF+1}], 1024
    s_lshr_b32 s3, s{sWave}, 1
    s_lshl_b32 s3, s3, 13
    s_and_b32 s4, s{sWave}, 1
    s_lshl_b32 s4, s4, 9
    s_add_u32 s{sOff9}, s3, s4
    s_mov_b32 s{sWj}, 0x40100
    s_add_u32 s{sWj2}, s{sWn}, 256
    s_mov_b32 s{sOOB}, 0x40000000
    """)

def code_pf(seg, hint=None):
    if not cfg.cpf: return []
    return [S(f"s_mov_b32 m0, {DUM}"), dma(253, sCode, f"s{sCP}", 0, cfg.cpff, seg, ("cp", 0), hint=None if hint is None else hint + 2, rel=hint)]

def mall_pf(k, seg):
    if not (cfg.mpf >> k) & 1: return []
    return [vload(1, ("v", vPF[k]), vPF[k], [sWo, sW][k], "0", 0, "", ("pf", k), seg=seg, rel=26, hint=28)]

def w_dma(ks, slot, seg, tag, hint0=None):
    o = []
    for c in range(2):
        o.append(S(f"s_add_u32 m0, s{sM0V}, {WOFF + slot*VS + c*(4128-128)}"))
        o.append(dma(vdW, sW, "0", 128 * c, cfg.wqf, seg, tag, hint=None if hint0 is None else hint0 + cfg.dpair * c + 2, rel=None if hint0 is None else hint0 + cfg.dpair * c))
    if ks % 2 == 0: o.append(V(f"v_add_u32 v{vdW}, 0x40000, v{vdW}"))
    else:
        o.append(S(f"s_add_u32 s{sWr}, s{sWr}, 0x80000"))
        sel = f"s_cselect_b32 s{sWd}, s{sWj}, s{sWj2}" if ks == 15 else f"s_cselect_b32 s{sWd}, 0x40000, s{sWn}"
        o.append(I(f"s_and_b32 s{sWr}, s{sWr}, 0x3fffff\n{sel}", "salu", rd=[f"s{sWr}", f"s{sWj}", f"s{sWj2}"], wr=[f"s{sWr}", f"s{sWd}"], cost=8))
        o.append(V(f"v_add_u32 v{vdW}, s{sWd}, v{vdW}"))
    return o
def k_dma(slot, seg, tag, hint0=None):
    o = []
    for c in range(2):
        o.append(S(f"s_add_u32 m0, s{sM0K}, {KB + slot*8192 + c*(4096-128)}") if (slot or c) else S(f"s_mov_b32 m0, s{sM0K}"))
        o.append(dma(vdK, sK, "0", 128 * c, cfg.kvf, seg, tag, hint=None if hint0 is None else hint0 + cfg.dpair * c + 2, rel=None if hint0 is None else hint0 + cfg.dpair * c))
    return o
def v_dma(slot, seg, tag, hint0=None):
    o = []
    for c in range(2):
        o.append(S(f"s_add_u32 m0, s{sM0V}, {slot*VS + c*(4128-128)}") if (slot or c) else S(f"s_mov_b32 m0, s{sM0V}"))
        o.append(dma(vdV, sV, "0", 128 * c, cfg.kvf, seg, tag, hint=None if hint0 is None else hint0 + cfg.dpair * c + 2, rel=None if hint0 is None else hint0 + cfg.dpair * c))
    return o

XAREA = [0, 0, 1, 1, 2, 2, 1, 1]
XSTR = [4096, 4128, 1024]
def x_dma(c, seg=None, hint0=None):
    ar = XAREA[c]
    o = [S(f"s_add_u32 s{sT2}, s{sRx}, {c*128}"), S(f"s_and_b32 s{sT2}, s{sT2}, 0x3ff")]
    for rg in range(4):
        d = ((c & 1) * 4 + rg) * XSTR[ar]
        base = f"s{[sM0K, sM0Vs, sMx][ar]}"
        o.append(S(f"s_add_u32 m0, {base}, {d}") if d >= 0 else S(f"s_sub_u32 m0, {base}, {-d}"))
        o.append(dma(80 + rg, sX, f"s{sT2}", 0, cfg.xf, seg, ("x", c), hint=None if hint0 is None else hint0 + 4 * rg + 1, rel=None if hint0 is None else hint0 + 4 * rg))
    return o
def x9_dma(i, seg=None):
    return [S(f"s_add_u32 s{sT2}, s{sRx9}, {256*i}"), S(f"s_and_b32 s{sT2}, s{sT2}, 0x3ff"),
            S(f"s_add_u32 m0, s{sM0K}, {MB + X9 + i*4096}"), dma(89, sX, f"s{sT2}", 0, cfg.xf, seg, ("x9", i))]
XA = [[85, 86], [87, 88], [96, 97]]
vX9 = [251, 252]
def x_reads(c, seg=None):
    o = []; ar = XAREA[c]
    for e in range(2):
        for qt in range(2):
            o.append(dsr128(("a", xa(qt, 2 * c + e)), XA[ar][e], ((c & 1) * 4 + 2 * qt) * XSTR[ar], seg=seg))
    return o

def setup2():
    o = []
    o += w_dma(0, 0, None, ("W", -16)) + x_dma(0) + x9_dma(0)
    o += w_dma(1, 1, None, ("W", -15)) + x_dma(1)
    o += setup_srd() + stamp(0)
    t = f"""
    v_lshrrev_b32 v75, 2, v94             ; m>>2
    v_and_b32 v76, 3, v94                 ; m&3
    v_lshlrev_b32 v77, 10, v75
    v_lshl_add_u32 v77, v76, 7, v77       ; (m>>2)*1024 + (m&3)*128
    v_lshlrev_b32 v78, 1, v75
    v_bfe_u32 v79, v94, 1, 1
    v_or_b32 v78, v78, v79
    v_xor_b32 v78, v78, v84
    v_lshl_add_u32 v77, v78, 4, v77
    v_add_u32 v{vK9[0]}, s{sOff9}, v77
    v_xor_b32 v{vK9[1]}, 64, v{vK9[0]}
    """
    for fp in range(4):
        t += f"""
    s_xor_b32 s3, s{sWave}, {fp}
    s_lshr_b32 s4, s3, 1
    s_lshl_b32 s4, s4, 12
    s_and_b32 s3, s3, 1
    s_lshl_b32 s3, s3, 6
    v_xor_b32 v79, s3, v77
    v_add_u32 v{90+fp}, s4, v79
    """
    t += f"""
    v_lshrrev_b32 v78, 1, v84
    v_mul_u32_u24 v77, 2064, v78
    v_and_b32 v78, 1, v84
    v_mul_u32_u24 v78, 1032, v78
    v_add_u32 v77, v77, v78
    v_add_u32 v98, {VB}, v77
    v_lshrrev_b32 v78, 1, v75
    v_lshlrev_b32 v78, 2, v78
    v_xor_b32 v78, v78, v76
    v_lshlrev_b32 v78, 4, v78
    v_lshl_add_u32 v99, v75, 7, v78
    """
    for Fp in range(4):
        t += f"""
    s_xor_b32 s3, s{sWave}, {Fp}
    s_lshr_b32 s4, s3, 1
    s_mul_i32 s4, s4, 4128
    s_and_b32 s3, s3, 1
    s_lshl_b32 s3, s3, 6
    v_xor_b32 v79, s3, v99
    v_add3_u32 v{vT[Fp]}, v79, v98, s4
    """
    t += f"""
    v_add_u32 v{vL}, {MB}, v253
    s_lshr_b32 s3, s{sWave}, 1
    s_lshl_b32 s3, s3, 10
    s_and_b32 s4, s{sWave}, 1
    s_lshl_b32 s4, s4, 3
    s_add_u32 s3, s3, s4
    v_add_u32 v{vP9w}, s3, v{vL}
    ; x staging read addresses
    v_and_b32 v75, 7, v94
    v_lshrrev_b32 v76, 1, v94
    v_xor_b32 v76, v76, v84
    v_lshlrev_b32 v76, 4, v76
    v_lshl_add_u32 v76, v75, 7, v76       ; r8*128 + (g ^ (m>>1))*16
    v_lshrrev_b32 v75, 3, v94
    v_xor_b32 v77, 64, v76
    v_lshlrev_b32 v78, 12, v75
    v_add3_u32 v85, v76, v78, s{sM0K}
    v_add3_u32 v86, v77, v78, s{sM0K}
    v_mul_u32_u24 v78, 4128, v75
    v_add3_u32 v87, v76, v78, s{sM0Vs}
    v_add3_u32 v88, v77, v78, s{sM0Vs}
    v_lshlrev_b32 v78, 10, v75
    v_add3_u32 v96, v76, v78, s{sMx}
    v_add3_u32 v97, v77, v78, s{sMx}
    v_add_u32 v78, {MB + X9}, v78
    v_add_u32 v{vX9[0]}, v76, v78
    v_add_u32 v{vX9[1]}, v77, v78
    v_mov_b32 v{vK[0]}, v90
    v_mov_b32 v{vK[1]}, v91
    v_mov_b32 v{vK[2]}, v92
    v_mov_b32 v{vK[3]}, v93
    v_mov_b32 v{ONES}, 0x3f803f80
    v_mov_b32 v{ONES+1}, 0x3f803f80
    v_mov_b32 v{ONES+2}, 0x3f803f80
    v_mov_b32 v{ONES+3}, 0x3f803f80
    s_mov_b32 s{sC}, {f2u(SCALE):#x}
    s_mov_b32 s{sThr}, 0x4f800000
    s_mov_b64 s[{sOvf}:{sOvf+1}], 0
    s_mov_b64 s[{sMsk}:{sMsk+1}], 0
    s_mov_b32 s{sRnd}, 0
    s_mov_b32 s96, 0
    s_and_b32 s3, s{sB}, 15
    s_lshl_b32 s3, s3, 2
    s_add_u32 s3, s3, s{sWave}            ; 0..63
    s_lshl_b32 s4, s3, 13
    v_lshl_add_u32 v{vPF[0]}, v74, 7, s4
    s_lshl_b32 s3, s3, 16
    s_lshl_b32 s4, s{sJ}, 10
    s_add_u32 s3, s3, s4
    s_add_u32 s3, s3, 256
    v_and_b32 v75, 7, v74
    v_lshrrev_b32 v76, 3, v74
    v_min_u32 v76, 5, v76
    v_lshlrev_b32 v76, 7, v76
    v_lshl_add_u32 v75, v75, 13, v76
    v_add_u32 v{vPF[1]}, s3, v75
    s_add_u32 s{sO9}, s{sQ9w}, {O9 + 3*4096}
    s_mul_i32 s{sKV}, s{sB}, {8192*cfg.rot}
    s_and_b32 s{sKV}, s{sKV}, 0x1ffff
    v_add_u32 v{vdK}, s{sKV}, v{vdK}
    v_add_u32 v{vdV}, s{sKV}, v{vdV}
    s_mov_b32 s{s8k}, 8192
    s_mov_b32 s{sNeg}, {(8192-131072) & 0xffffffff:#x}
    XDMA2
    s_waitcnt vmcnt(12) lgkmcnt(0)
    s_mul_i32 s{sTag}, s{sTag}, 1664525
    s_add_u32 s{sTag}, s{sTag}, 1013904223
    """
    t1, t2 = t.split("XDMA2")
    o += PS(t1) + w_dma(2, 2, None, ("W", -14)) + x_dma(2) + PS(t2)
    o += x_reads(0)
    return o

def tile_gemm(prog, aq, accb, ring_off, seg, Fs, bq, b9, first):
    for F in Fs:
        for u in range(2):
            q = aq.get()
            for a in range(2):
                prog.append(dsrtr((q[0], q[1] + 2 * a), vT[F], ring_off + a * 512 + u * 8, seg=seg))
            for qt in range(2):
                d = ("v", acc(accb, F, u, qt))
                prog.append(mfma(d, q, bq[qt], 0 if first else d))
            if F == 0:
                d = ("v", acc9(accb, u))
                prog.append(mfma(d, q, b9, 0 if first else d))

def qp(prog, aq, ks, seg, Fs):
    if 0 in Fs: prog.append(dsr128(("v", B9x), vX9[ks & 1], (ks >> 1) * 2048, seg=seg))
    tile_gemm(prog, aq, QACC, WOFF + (ks % 4) * VS, seg, Fs, [("a", xa(0, ks)), ("a", xa(1, ks))], ("v", B9x), ks == 0)

def pv(prog, aq, T, seg, Fs, pbuf):
    first = (T == 0)
    if 0 in Fs:
        prog.append(dsr128(("v", B9p), vL, P9 + (T % 4) * 1024, seg=seg))
        for qt in range(2):
            prog.append(mfma(("v", LA[qt]), ("v", ONES), ("v", pbuf + 4 * qt), 0 if first else ("v", LA[qt])))
        prog.append(mfma(("v", LA[2]), ("v", ONES), ("v", B9p), 0 if first else ("v", LA[2])))
    tile_gemm(prog, aq, OACC, (T % 4) * VS, seg, Fs, [("v", pbuf), ("v", pbuf + 4)], ("v", B9p), first)

def qk(prog, aq, T, seg, zero=False):
    if cfg.qkchain:
        for u in range(2):
            qs = []
            for qt in range(2):
                for f in range(4):
                    if qt == 0:
                        qs.append(aq.get()); prog.append(dsr128(qs[f], vK[f], KB + (T % 4) * 8192 + u * 512, seg=seg))
                    d = ("v", St(u, qt))
                    prog.append(mfma(d, qs[f], ("a", qfrag(QC, qt, f)), d if f else (0 if T == 0 or zero else ("v", CI[qt]))))
        return
    for u in range(2):
        for f in range(4):
            q = aq.get()
            prog.append(dsr128(q, vK[f], KB + (T % 4) * 8192 + u * 512, seg=seg))
            for qt in range(2):
                d = ("v", St(u, qt))
                c = d if f else (0 if T == 0 or zero else ("v", CI[qt]))
                prog.append(mfma(d, q, ("a", qfrag(QC, qt, f)), c))

def qk9(prog, aq, T, seg, addr, c0):
    for f in range(4):
        q = aq.get()
        prog.append(dsr128(q, addr[f & 1], KB + (T % 4) * 8192 + (f >> 1) * 4096, seg=seg))
        prog.append(mfma(("v", S9), q, ("v", Q9r + 4 * f), ("v", S9) if f else c0))

def sm9(prog, T, seg):
    for r in range(4): prog.append(V(f"v_exp_f32 v{S9+r}, v{S9+r}"))
    prog.append(V(f"v_cvt_pk_bf16_f32 v{P9pk}, v{S9}, v{S9+1}"))
    prog.append(V(f"v_cvt_pk_bf16_f32 v{P9pk+1}, v{S9+2}, v{S9+3}"))
    prog.append(dsw(2, vP9w, ("v", P9pk), P9 + (T % 4) * 1024, seg=seg))

def sm_exp(prog):
    for u in range(2):
        for qt in range(2):
            for r in range(4): prog.append(V(f"v_exp_f32 v{St(u,qt)+r}, v{St(u,qt)+r}"))
def sm_cvt(prog, pbuf):
    for u in range(2):
        for qt in range(2):
            for h in range(2):
                prog.append(V(f"v_cvt_pk_bf16_f32 v{pbuf+4*qt+2*u+h}, v{St(u,qt)+2*h}, v{St(u,qt)+2*h+1}"))

def xmax(prog, m, t):
    for sw in ("32", "16"):
        prog.append(V(f"v_mov_b32 v{t}, v{m}"))
        prog.append(V(f"v_permlane{sw}_swap_b32 v{m}, v{t}"))
        prog.append(V(f"v_max_f32 v{m}, v{m}, v{t}"))
_lab = [0]
FAR = []
def use_true_max(prog, k, m, t, rnd):
    _lab[0] += 1; n = _lab[0]
    far = f"L_tm{n}:\n"
    far += f"s_mul_i32 s3, s{sRnd}, 3072\n" if rnd is None else f"s_mov_b32 s3, {rnd*3072}\n"
    far += f"s_add_u32 s3, s3, {MXA + k*1024}\n"
    if k < 2:
        far += f"v_lshrrev_b32 v{t}, 2, v253\nv_add_u32 v{t}, s3, v{t}\ns_lshl_b32 s3, s{sWave}, 8\nv_add_u32 v{t}, s3, v{t}\nds_read_b32 v{m}, v{t}\ns_waitcnt lgkmcnt(0)\n"
    else:
        far += f"v_lshrrev_b32 v{t}, 2, v253\nv_add_u32 v{t}, s3, v{t}\nds_read_b32 v{m}, v{t}\n"
        for w in range(1, 4):
            far += f"ds_read_b32 v{vTmp}, v{t} offset:{256*w}\ns_waitcnt lgkmcnt(0)\nv_max_f32 v{m}, v{m}, v{vTmp}\n"
    FAR.append(far + f"s_branch L_tr{n}")
    prog.append(I(f"s_cmp_eq_u32 s{sMode}, 2\ns_cbranch_scc1 L_tm{n}\nL_tr{n}:", "blob", rd=[f"v{m}"], wr=[f"v{m}", f"v{t}", f"v{vTmp}", "s3"], cost=8))
def max_main(prog, rnd=None):
    for qt in range(2):
        m, t = (vt2, vt3) if qt == 0 else (vt4, vt5)
        a, b = St(0, qt), St(1, qt)
        prog.append(V(f"v_max3_f32 v{m}, v{a}, v{a+1}, v{a+2}"))
        prog.append(V(f"v_max3_f32 v{m}, v{m}, v{a+3}, v{b}"))
        prog.append(V(f"v_max3_f32 v{m}, v{m}, v{b+1}, v{b+2}"))
        prog.append(V(f"v_max_f32 v{m}, v{m}, v{b+3}"))
        xmax(prog, m, t)
        use_true_max(prog, qt, m, t, rnd)
        for r in range(4): prog.append(V(f"v_sub_f32 v{CI[qt]+r}, 0, v{m}"))
        for x in (a, b):
            for r in range(4): prog.append(V(f"v_sub_f32 v{x+r}, v{x+r}, v{m}"))
def max_9(prog, aq, seg, rnd=None):
    prog.append(V(f"v_subrev_u32 v{vt0}, s{sOff9}, v{vK9[0]}"))
    prog.append(V(f"v_subrev_u32 v{vt1}, s{sOff9}, v{vK9[1]}"))
    qk9(prog, aq, 0, seg, [vt0, vt1], 0)
    m, t = vt0, vt1
    prog.append(V(f"v_max3_f32 v{m}, v{S9}, v{S9+1}, v{S9+2}"))
    prog.append(V(f"v_max_f32 v{m}, v{m}, v{S9+3}"))
    xmax(prog, m, t)
    use_true_max(prog, 2, m, t, rnd)
    for r in range(4): prog.append(V(f"v_sub_f32 v{CI[2]+r}, 0, v{m}"))

def pack_tiles(prog, base, F, qt, scale, dst):
    t0, t1 = acc(base, F, 0, qt), acc(base, F, 1, qt)
    for t in (t0, t1):
        for r in range(4): prog.append(V(f"v_mul_f32 v{t+r}, {scale}, v{t+r}"))
    src = [(t0, t0 + 1), (t0 + 2, t0 + 3), (t1, t1 + 1), (t1 + 2, t1 + 3)]
    inpl = [t0, t0 + 1, t1, t1 + 1]
    for k, (a, b) in enumerate(src):
        d = dst[1] + k if (dst and dst[0] == "v") else inpl[k]
        prog.append(V(f"v_cvt_pk_bf16_f32 v{d}, v{a}, v{b}"))
        if dst and dst[0] == "a": prog.append(V(f"v_accvgpr_write_b32 a{dst[1]+k}, v{d}"))
def pack9(prog, base, scale, soff, off, seg):
    a, b = acc9(base, 0), acc9(base, 1)
    for r in range(8): prog.append(V(f"v_mul_f32 v{a+r}, {scale}, v{a+r}"))
    prog.append(V(f"v_cvt_pk_bf16_f32 v{a}, v{a}, v{a+1}"))
    prog.append(V(f"v_cvt_pk_bf16_f32 v{a+1}, v{a+2}, v{a+3}"))
    prog.append(V(f"v_cvt_pk_bf16_f32 v{a+2}, v{b}, v{b+1}"))
    prog.append(V(f"v_cvt_pk_bf16_f32 v{a+3}, v{b+2}, v{b+3}"))
    prog.append(V(f"v_add_u32 v{vTmp}, s{soff}, v{vL}"))
    prog.append(dsw(4, vTmp, ("v", a), off, seg=seg))

def q_fin(prog, seg):
    for F in range(4): prog.append(dsr128(("v", Q9r + 4 * F), vL, Q9 + F * 1024, seg=seg))
    for F in range(4):
        for qt in range(2): pack_tiles(prog, QACC, F, qt, f"s{sC}", ("a", qfrag(QC, qt, F)))
def q9_fin(prog, seg): pack9(prog, QACC, f"s{sC}", sQ9w, Q9, seg)

def o_fin(prog, dst, seg):
    for k in (2, 0, 1):
        prog.append(V(f"v_cmp_nge_f32 vcc, s{sThr}, v{LA[k]}"))
        prog.append(S(f"s_and_b64 vcc, vcc, s[{sMsk}:{sMsk+1}]"))
        prog.append(S(f"s_or_b64 s[{sOvf}:{sOvf+1}], s[{sOvf}:{sOvf+1}], vcc"))
        prog.append(V(f"v_rcp_f32 v{RC[k]}, v{LA[k]}"))
    pack9(prog, OACC, f"v{RC[2]}", sO9, 0, seg)
    for F in range(4):
        for qt in range(2):
            pack_tiles(prog, OACC, F, qt, f"v{RC[qt]}", None if dst == "blob" else ("v", dst(qt, F)))
    if dst == "blob":
        _lab[0] += 1; n = _lab[0]
        srcs = []
        def blk(base):
            t = []
            for F in range(4):
                for qt in range(2):
                    t0, t1 = acc(OACC, F, 0, qt), acc(OACC, F, 1, qt)
                    for k, s in enumerate([t0, t0 + 1, t1, t1 + 1]):
                        t.append(f"v_accvgpr_write_b32 a{qfrag(base,qt,F)+k}, v{s}"); srcs.append(f"v{s}")
            return "\n".join(t)
        txt = f"s_cmp_eq_u32 s{sRnd}, 2\ns_cbranch_scc1 L_ob{n}\n{blk(ST0)}\ns_branch L_oj{n}\nL_ob{n}:\n{blk(ST1)}\nL_oj{n}:"
        prog.append(I(txt, "blob", rd=list(set(srcs)) + [f"s{sRnd}"], wr=R("a", ST0, 64), cost=170))

def kv_group(prog, i, doK=True, doV=True, seg=None, h0=0):
    seg = i if seg is None else seg
    if doK:
        prog += k_dma((i + 3) % 4, seg, ("K", i + 3), hint0=1)
        d = sOo[i & 1]
        prog.append(S(f"s_add_u32 s{sKV}, s{sKV}, 8192"))
        sel = f"s_cselect_b32 s{d}, 0x22000, s{s8k}" if i + 3 == 15 else f"s_cselect_b32 s{d}, s{s8k}, s{sNeg}"
        prog.append(I(f"s_and_b32 s{sKV}, s{sKV}, 0x1ffff\n{sel}", "salu", rd=[f"s{sKV}"], wr=[f"s{sKV}", f"s{d}"], cost=8))
        prog.append(V(f"v_add_u32 v{vdK}, s{d}, v{vdK}"))
    if doV:
        prog += v_dma((i + 2) % 4, seg, ("V", i + 2), hint0=1 + 2 * cfg.dsp + h0)
        prog.append(V(f"v_add_u32 v{vdV}, s{sOo[(i-1)&1]}, v{vdV}"))

def need(i, W=True):
    n = [("K", i), ("V", i - 1)]
    if i % 2 == 0 and not cfg.hackk: n.append(("K", i + 1))
    if W: n.append(("W", i))
    return n

def prologue():
    prog = []; aq = AQ_()
    for p in range(16):
        nd = [("W", p - 16)]
        if p % 4 == 0: nd.append(("x9", p // 4))
        if p % 2 == 1 and p < 15: nd.append(("x", (p + 1) // 2))
        prog.append(barrier(p, nd))
        if p % 2 == 1 and p < 15: prog += x_reads((p + 1) // 2, p)
        if p == 9: prog += code_pf(p)
        if p == cfg.kpre: kv_group(prog, -3, doV=False, seg=p)
        if p == cfg.kpre + 1: kv_group(prog, -2, doV=False, seg=p)
        if p == 12: kv_group(prog, -2, doK=False, seg=p, h0=-7)
        if p == 14:
            for _ in range(4):
                prog.append(S(f"s_mov_b32 m0, {DUM}"))
                prog.append(dma(vdV, sV, f"s{sOOB}", 0, "", p, ("dum", 0)))
        if p == 15: kv_group(prog, -1, seg=p)
        u = p + 3
        prog += w_dma(u % 16, u % 4, p, ("W", u - 16), hint0=14 if p == 15 else 9 if p in (cfg.kpre, cfg.kpre + 1, 12) else 0)
        if p in (0, 2, 4): prog += x9_dma(1 + p // 2, p)
        xs = {0: 3, 1: 4, 2: 5, 4: 6, 6: 7}
        if p in xs: prog += x_dma(xs[p], p, hint0=None)
        if p >= 1: qp(prog, aq, p - 1, p - 1, [2, 3])
        qp(prog, aq, p, p, [0, 1] if p < 15 else [0, 1, 2, 3])
        if p == 15: q9_fin(prog, p)
    return prog

def bodyA():
    prog = []; aq = AQ_()
    for i in range(16):
        prog.append(barrier(i, need(i)))
        kv_group(prog, i)
        u = i + 3
        prog += w_dma(u % 16, u % 4, i, ("W", u), hint0=1 + 4 * cfg.dsp)
        if i in (3, 7, 11): prog += code_pf(i, 1 + 6 * cfg.dsp)
        if i == cfg.mp0: prog += mall_pf(0, i)
        if i == cfg.mp0 + 4: prog += mall_pf(1, i)
        if i == 0:
            q_fin(prog, 0)
            pv(prog, aq, -1, 0, [0, 1, 2, 3], PP)
            qk(prog, aq, 0, 0)
            max_9(prog, aq, 0)
            qk9(prog, aq, 0, 0, vK9, ("v", CI[2])); sm9(prog, 0, 0)
            max_main(prog); sm_exp(prog); sm_cvt(prog, PP)
            qp(prog, aq, 0, 0, [0, 1])
            o_fin(prog, "blob", 1)
            continue
        qp(prog, aq, i - 1, i - 1, [2, 3])
        qk(prog, aq, i, i)
        sm_exp(prog)
        if i % 2 == 0:
            qk9(prog, aq, i, i, vK9, ("v", CI[2])); sm9(prog, i, i)
        pv(prog, aq, i - 1, i, [0, 1, 2, 3], PP)
        sm_cvt(prog, PP)
        qp(prog, aq, i, i, [0, 1] if i < 15 else [0, 1, 2, 3])
        if i == 15: q9_fin(prog, i)
    return prog

def wo_dma(h, slicereg, lds, tag, seg, hint0=None, va=None):
    o = []
    for F in range(4):
        lit = h * 131072 + F * 32768
        o.append(S(f"s_add_u32 s{sWt}, s{slicereg}, {lit}") if lit else S(f"s_mov_b32 s{sWt}, s{slicereg}"))
        o.append(S(f"s_add_u32 m0, s{sM0V}, {lds + F*4128}") if (lds or F) else S(f"s_mov_b32 m0, s{sM0V}"))
        a = (va or vAT)[F % len(va or vAT)]
        o.append(V(f"v_add_u32 v{a}, s{sWt}, v{vdW}"))
        o.append(dma(a, sWo, "0", 0, cfg.wof, seg, tag, hint=None if hint0 is None else hint0 + cfg.dsp * F + 2, rel=None if hint0 is None else hint0 + cfg.dsp * F))
    return o
PAIR = 2 * VS
sSl4 = [44, 45, 47, 71]
def vUB(f, Fn, u): return 132 + f * 4 + Fn * 2 + u
vU = vUB
vO9 = [164, 165, 166, 167]
G9 = 148
O3Q = [44, 48, 52, 56, 64, 68, 168, 60]
def o2frag(qt, F): return qfrag(QACC, qt, F)
def o3frag(qt, F): return O3Q[qt * 4 + F]
def ofrag(h, qt, F):
    return [("a", qfrag(ST0, qt, F)), ("a", qfrag(ST1, qt, F)), ("v", o2frag(qt, F)), ("v", o3frag(qt, F))][h]
def tacc(base, Fn, u, qt): return base + ((Fn * 2 + u) * 2 + qt) * 4

def b_addr():
    t0, t1, t2, t3 = 168, 169, 170, 171
    o = [V(x) if x.startswith("v_") else S(x) for x in f"""v_and_b32 v{vTmp}, 0x7f, v{vdV}
v_bfe_u32 v{vdW}, v{vdV}, 8, 5
v_lshl_add_u32 v{vdW}, v{vdW}, 10, v{vTmp}
v_lshrrev_b32 v{t0}, 9, v253
v_mul_u32_u24 v{t0}, 2064, v{t0}
v_bfe_u32 v{t1}, v253, 8, 1
v_mul_u32_u24 v{t1}, 1032, v{t1}
v_add_u32 v{t0}, v{t0}, v{t1}
v_add_u32 v{t0}, {WB}, v{t0}
v_bfe_u32 v{t1}, v253, 6, 2
v_bfe_u32 v{t2}, v253, 4, 2
v_lshrrev_b32 v{t3}, 1, v{t1}
v_lshlrev_b32 v{t3}, 2, v{t3}
v_xor_b32 v{t2}, v{t2}, v{t3}
v_lshlrev_b32 v{t2}, 4, v{t2}
v_lshl_add_u32 v{t2}, v{t1}, 7, v{t2}
s_lshr_b32 s{sT0}, s{sWave}, 1
s_lshl_b32 s{sT0}, s{sT0}, 6
v_xor_b32 v{t2}, s{sT0}, v{t2}
v_xor_b32 v{t3}, 64, v{t2}
v_add_u32 v{t2}, v{t2}, v{t0}
v_add_u32 v{t3}, v{t3}, v{t0}
s_and_b32 s{sT1}, s{sWave}, 1
s_lshl_b32 s{sT1}, s{sT1}, 3""".split("\n")]
    for f in range(4):
        o += [S(f"s_xor_b32 s{sT0}, s{sWave}, {f}"), S(f"s_lshl_b32 s{sT2}, s{sT0}, 10"), V(f"v_add_u32 v{vO9[f]}, s{sT2}, v{vL}"),
              S(f"s_mul_i32 s{sT0}, s{sT0}, 4128"), S(f"s_add_u32 s{sT0}, s{sT0}, s{sT1}"),
              V(f"v_add_u32 v{vUB(f,0,0)}, s{sT0}, v{t2}"), V(f"v_add_u32 v{vUB(f,1,0)}, s{sT0}, v{t3}"),
              S(f"s_xor_b32 s{sT0}, s{sT0}, 8"),
              V(f"v_add_u32 v{vUB(f,0,1)}, s{sT0}, v{t2}"), V(f"v_add_u32 v{vUB(f,1,1)}, s{sT0}, v{t3}")]
    return o

def op_kstep(prog, aq, h, f, seg, accm, acc9_, b9, addr, off, reads=True, mf=True, first=False):
    for Fn in range(2):
        for u in range(2):
            q = aq.get()
            if reads:
                for a in range(2): prog.append(dsrtr((q[0], q[1] + 2 * a), addr(f, Fn, u), off + a * 512, seg=seg))
            if mf:
                for qt in range(2):
                    d = (accm[0], tacc(accm[1], Fn, u, qt))
                    prog.append(mfma(d, q, ofrag(h, qt, f), 0 if first else d))
                if Fn == 0 and u == 0: prog.append(mfma(acc9_, q, b9, 0 if first else acc9_))
def g_kstep(prog, aq, m, f, seg):
    h, sl = m // 4, m % 4
    prog.append(dsr128(("v", B9x), vO9[f], O9 + h * 4096, seg=seg))
    op_kstep(prog, aq, h, f, seg, ("a", 32 * sl), ("v", G9 + 4 * sl), ("v", B9x), vUB, (m % 3) * PAIR, first=(h == 0 and f == 0))

def bodyB():
    prog = []; aq = AQ_()
    for i in range(17):
        nd = need(i, W=False) if i < 16 else [("V", 15)]
        G0 = cfg.g0
        if G0 <= i < G0 + 12: nd.append(("G", i - G0))
        prog.append(barrier(i, nd))
        if i < 14: kv_group(prog, i, doK=(i + 3 < 16), doV=(i + 2 < 16))
        if i == 1: prog += b_addr()
        h0 = 1 + 4 * cfg.dsp if i < 14 else 1
        m = i + 2 - G0
        if 0 <= m < 12: prog += wo_dma(m // 4, sSl4[m % 4], 2 * PAIR + (m % 3) * PAIR, ("G", m), i, hint0=h0, va=[vA])
        if m in (12, 13): prog += wo_dma(3, sSl4[m - 12], (m - 10) * PAIR, ("S", m - 12), i, hint0=h0, va=[vA])
        if i in (2, 7, 12, 15): prog += code_pf(i, 1 + 8 * cfg.dsp if i < 15 else 18)
        if i == 0:
            q_fin(prog, 0)
            pv(prog, aq, -1, 0, [0, 1, 2, 3], PP)
            qk(prog, aq, 0, 0)
            max_9(prog, aq, 0, 3)
            qk9(prog, aq, 0, 0, vK9, ("v", CI[2])); sm9(prog, 0, 0)
            max_main(prog, 3); sm_exp(prog); sm_cvt(prog, PP)
            o_fin(prog, o2frag, 1)
            prog.append(S(f"s_add_u32 s{sO9}, s{sO9}, 4096"))
            continue
        if G0 < i <= G0 + 12: g_kstep(prog, aq, i - G0 - 1, 3, i - 1)
        if i < 16:
            qk(prog, aq, i, i)
            sm_exp(prog)
            if i % 2 == 0:
                qk9(prog, aq, i, i, vK9, ("v", CI[2])); sm9(prog, i, i)
        pv(prog, aq, i - 1, i, [0, 1, 2, 3], PP)
        if i < 16: sm_cvt(prog, PP)
        if i == 16:
            o_fin(prog, o3frag, 16)
            prog += [S(f"s_or_b32 s{sT0}, s{sOvf}, s{sOvf+1}"), V(f"v_mov_b32 v{vt0}, s{sT0}"), S(f"s_lshl_b32 s{sT1}, s{sWave}, 2"),
                     S(f"s_add_u32 s{sT1}, s{sT1}, {VOTE}"), V(f"v_mov_b32 v{vt1}, s{sT1}"), dsw(1, vt1, ("v", vt0), 0, seg=16, cost=8)]
        if G0 <= i < G0 + 12:
            for f in range(3 if i < 16 else 4): g_kstep(prog, aq, i - G0, f, i)
    for k in range(16): prog.append(V(f"v_subrev_u32 v{vU(0,0,0)+k}, {WOFF}, v{vU(0,0,0)+k}"))
    prog.append(barrier(17, []))
    return prog

def bodyC():
    prog = []; aq = AQ_(); MX = LA
    for i in range(16):
        prog.append(barrier(i, [t for t in need(i) if t[0] != "V"]))
        kv_group(prog, i, doV=False)
        u = i + 3
        prog += w_dma(u % 16, u % 4, i, ("W", u), hint0=1 + 4 * cfg.dsp)
        if i == 0:
            q_fin(prog, 0)
            for k in range(3): prog.append(V(f"v_mov_b32 v{MX[k]}, 0xff800000"))
        else: qp(prog, aq, i - 1, i - 1, [2, 3])
        qk(prog, aq, i, i, zero=True)
        tiles = [(St(u_, qt), MX[qt]) for u_ in range(2) for qt in range(2)]
        if i % 2 == 0:
            qk9(prog, aq, i, i, vK9, 0); tiles.append((S9, MX[2]))
        for t, m in tiles:
            prog.append(V(f"v_max3_f32 v{m}, v{m}, v{t}, v{t+1}")); prog.append(V(f"v_max3_f32 v{m}, v{m}, v{t+2}, v{t+3}"))
        qp(prog, aq, i, i, [0, 1] if i < 15 else [0, 1, 2, 3])
        if i == 15:
            q9_fin(prog, i)
            prog += [S(f"s_mul_i32 s{sT2}, s{sRnd}, 3072"), S(f"s_lshl_b32 s3, s{sWave}, 8"), S(f"s_add_u32 s{sT2}, s{sT2}, s3"),
                     S(f"s_add_u32 s{sT2}, s{sT2}, {MXA}"), V(f"v_lshrrev_b32 v{vt1}, 2, v253"), V(f"v_add_u32 v{vt1}, s{sT2}, v{vt1}")]
            for k in range(3):
                xmax(prog, MX[k], vt0); prog.append(dsw(1, vt1, ("v", MX[k]), k * 1024, seg=15))
    return prog
def restart(mode):
    return f"""
    s_waitcnt vmcnt(0) lgkmcnt(0)
    s_barrier
    s_mov_b32 s{sMode}, {mode}
    v_lshrrev_b32 v0, 4, v253
    s_lshl_b32 s3, s{sWave}, 6
    v_add_u32 v0, s3, v0
    s_branch L_restart
    """

TACC = 208
TPK = 16
OWN = 172
vL16, vL8, vFl = 88, 89, 90
vPl = [91, 92, 93, 94]
vOut = [4, 5, 6]
vSt = [7, 8]; vLd = [9, 11]; vFa, vPa = 97, 98
EU = [244, 248]
def o9frag(h, f): return ("a", (h * 4 + f) * 4) if h < 3 else ("v", 72 + 4 * f)
LAND = [("a", 64, "a", 80), ("a", 84, "a", 100), ("a", 104, "a", 120), ("v", G9, "v", 40)]
sPsrc, sPpl, sFlP, sPbase, sFbase = 4, 5, 7, 72, 73
sFlOff = 74
sDX = {4: (6, 41), 5: (43, 48), 6: (54, 55)}

def tail_setup():
    o = wo_dma(3, sSl4[2], 0, ("S", 2), None)
    t = ""
    for f in range(4): t += f"ds_read_b128 v[{72+4*f}:{75+4*f}], v{vO9[f]} offset:{O9+3*4096}\n"
    t += f"""
    v_mov_b32 v34, {VOTE}
    ds_read_b128 v[36:39], v34
    v_mov_b32 v{vL16}, v253
    v_lshrrev_b32 v{vL8}, 1, v253
    v_add_u32 v{vL8}, 0x1000, v{vL8}
    v_cmp_eq_u32 vcc, 0, v253
    v_mov_b32 v34, s{sOOB}
    v_cndmask_b32 v{vFl}, v34, 0, vcc
    v_mov_b32 v255, s{sTag}
    s_mul_i32 s3, s{sJ}, 147456
    s_mul_i32 s4, s{sWave}, 4608
    s_add_u32 s{sPbase}, s3, s4
    s_mul_i32 s3, s{sJ}, 18432
    s_add_u32 s{sOwn}, s3, s4
    s_lshl_b32 s3, s{sJ}, 7
    s_lshl_b32 s4, s{sWave}, 2
    s_add_u32 s{sFbase}, s3, s4
    s_lshl_b32 s3, s{sJ}, 4
    s_add_u32 s{sFlOff}, s3, s4
    s_mov_b32 s{sTrip}, 0
    """
    return o + PS(t)
def late_setup():
    t = f"""v_lshrrev_b32 v34, 4, v253
v_and_b32 v35, 15, v34
v_lshrrev_b32 v36, 4, v34
v_lshrrev_b32 v37, 2, v35
v_and_b32 v38, 1, v35
v_lshlrev_b32 v38, 4, v38
v_mov_b32 v39, 0x3f80
v_lshlrev_b32 v39, v38, v39
v_cmp_eq_u32 vcc, v36, v37
v_cndmask_b32 v39, 0, v39, vcc
v_and_b32 v38, 2, v35
v_cmp_eq_u32 vcc, 0, v38
v_cndmask_b32 v{EU[0]}, 0, v39, vcc
v_cndmask_b32 v{EU[0]+1}, v39, 0, vcc
v_mov_b32 v{EU[0]+2}, 0
v_mov_b32 v{EU[0]+3}, 0
v_mov_b32 v{EU[1]}, 0
v_mov_b32 v{EU[1]+1}, 0
v_mov_b32 v{EU[1]+2}, v{EU[0]}
v_mov_b32 v{EU[1]+3}, v{EU[0]+1}
"""
    for m in (4, 5, 6): t += src_regs(m, *sDX[m])
    t += src_regs(0, sPsrc, sPpl)
    return [V(x.strip()) if x.strip().startswith("v_") else S(x.strip()) for x in t.split("\n") if x.strip()]

def out_setup():
    t = f"""v_lshrrev_b32 v34, 4, v253
v_and_b32 v35, 15, v34
v_lshrrev_b32 v36, 4, v34
s_lshl_b32 s{sT2}, s{sWave}, 5
v_add_u32 v{vOut[0]}, s{sT2}, v35
v_lshlrev_b32 v{vOut[0]}, 11, v{vOut[0]}
v_lshl_add_u32 v{vOut[0]}, v36, 4, v{vOut[0]}
s_lshr_b32 s{sT2}, s{sWave}, 1
s_lshl_b32 s{sT2}, s{sT2}, 6
v_add_u32 v{vOut[0]}, s{sT2}, v{vOut[0]}
v_xor_b32 v{vOut[1]}, 64, v{vOut[0]}
v_add_u32 v{vOut[2]}, 0x80, v35
v_lshlrev_b32 v{vOut[2]}, 11, v{vOut[2]}
v_lshl_add_u32 v{vOut[2]}, v36, 4, v{vOut[2]}
s_and_b32 s{sT1}, s{sWave}, 1
s_lshl_b32 s{sT1}, s{sT1}, 3
s_add_u32 s{sT2}, s{sT2}, s{sT1}
v_add_u32 v{vOut[2]}, s{sT2}, v{vOut[2]}
v_mov_b32 v42, 0
v_mov_b32 v43, 0
"""
    return [V(x) if x.startswith("v_") else S(x) for x in t.split("\n") if x]

def src_regs(m, dsrc, dpl):
    return f"""
    s_add_u32 s3, s{sJ}, {(7 - m) & 7}
    s_and_b32 s3, s3, 7
    s_mul_i32 s{dsrc}, s3, 18432
    s_add_u32 s{dsrc}, s{dsrc}, s{sPbase}
    s_lshl_b32 s3, s3, 4
    s_add_u32 s{dpl}, s3, s{sFbase}
    """
def tail_next(slices=True):
    t = f"""s_add_u32 s{sTrip}, s{sTrip}, 1
s_mov_b32 s{sFlP}, s{sFl}
s_add_u32 s{sT2}, s{sJ}, s{sTrip}
s_and_b32 s{sT2}, s{sT2}, 7
s_mul_i32 s{sPst}, s{sT2}, 147456
s_add_u32 s{sPst}, s{sPst}, s{sOwn}
s_lshl_b32 s{sT2}, s{sT2}, 7
s_add_u32 s{sFl}, s{sT2}, s{sFlOff}"""
    if slices: t += f"""
s_mov_b32 s{sSlC}, s{sSlN}
s_add_u32 s{sSlN}, s{sSlN}, 128
s_and_b32 s{sSlN}, s{sSlN}, 0x3ff"""
    return [S(x) for x in t.split("\n")]
def tail_end():
    return PS(f"""
    s_sub_u32 s3, s{sJ}, s{sTrip}
    s_add_u32 s3, s3, 3
    s_and_b32 s3, s3, 7
    s_mul_i32 s{sPsrc}, s3, 18432
    s_add_u32 s{sPsrc}, s{sPsrc}, s{sPbase}
    s_lshl_b32 s3, s3, 4
    s_add_u32 s{sPpl}, s3, s{sFbase}
    s_cmp_lt_u32 s{sTrip}, 7
    s_cbranch_scc1 L_trip
    """)
def t_kstep(prog, aq, h, f, seg, accm, acc9_, n, **kw):
    op_kstep(prog, aq, h, f, seg, accm, acc9_, o9frag(h, f), vU, ((n + 2) % 4) * PAIR, **kw)
def t_pack(prog, accm, acc9_):
    k = 0
    for Fn in range(2):
        for u in range(2):
            for qt in range(2):
                t = tacc(accm[1], Fn, u, qt); d = TPK + (qt * 2 + Fn) * 4 + 2 * u
                for hf in range(2):
                    a, b = t + 2 * hf, t + 2 * hf + 1
                    if accm[0] == "a":
                        x = 34 + 2 * (k % 5); k += 1
                        prog.append(V(f"v_accvgpr_read_b32 v{x}, a{a}")); prog.append(V(f"v_accvgpr_read_b32 v{x+1}, a{b}")); a, b = x, x + 1
                    prog.append(V(f"v_cvt_pk_bf16_f32 v{d+hf}, v{a}, v{b}"))
            if Fn == 0 and u == 0:
                prog.append(V(f"v_cvt_pk_bf16_f32 v{TPK+16}, v{acc9_}, v{acc9_+1}"))
                prog.append(V(f"v_cvt_pk_bf16_f32 v{TPK+17}, v{acc9_+2}, v{acc9_+3}"))
def ident(L, zero=False):
    o = []
    for Fn in range(2):
        for u in range(2):
            for qt in range(2):
                d = ("v", tacc(OWN, Fn, u, qt))
                o.append(mfma(d, ("v", EU[u]), (L[0], L[1] + (qt * 2 + Fn) * 4), 0 if zero else d))
    o.append(mfma(("v", OWN + 32), ("v", EU[0]), (L[2], L[3]), 0 if zero else ("v", OWN + 32)))
    return o
def poll(n, soff, seg, rel=None):
    return [V(f"v_add_u32 v{vPa}, s{soff}, v{vFl}"),
            vload(1, ("v", vPl[n]), vPa, sF, "0", 0, "sc1", ("pl", n), seg=seg, rel=rel, hint=None if rel is None else rel + 1)]
def flag(soff, n, seg, rel=0):
    return [V(f"v_add_u32 v{vFa}, s{soff}, v{vFl}"), vstore(1, ("v", 255), vFa, sF, "0", 0, "sc1", ("fl", n), seg=seg, rel=rel, hint=rel + 1)]
def check(n, soff, seg):
    _lab[0] += 1; k = _lab[0]
    txt = f"""v_readfirstlane_b32 s3, v{vPl[n]}
s_nop 0
s_cmp_eq_u32 s3, s{sTag}
s_cbranch_scc1 L_ok{k}
s_mov_b32 s{sT1}, 0x40000
L_sp{k}:
buffer_load_dword v{vPl[n]}, v{vFl}, s[{sF}:{sF+3}], s{soff} offen sc1
s_waitcnt vmcnt(0)
v_readfirstlane_b32 s3, v{vPl[n]}
s_sub_u32 s{sT1}, s{sT1}, 1
s_cmp_eq_u32 s{sT1}, 0
s_cbranch_scc1 L_ok{k}
s_cmp_eq_u32 s3, s{sTag}
s_cbranch_scc0 L_sp{k}
L_ok{k}:"""
    return I(txt, "blob", rd=[f"v{vPl[n]}", f"s{soff}"], wr=[f"v{vPl[n]}", "s3", f"s{sT1}", f"ok{n}"], cost=44, seg=seg, hint=0)
def pdata(n, L, soff, seg, rel0=None, sp=3):
    o = [V(f"v_add_u32 v{vLd[0]}, s{soff}, v{vL16}"), V(f"v_add_u32 v{vLd[1]}, s{soff}, v{vL8}")]
    for c in range(5):
        kw = {} if rel0 is None else dict(rel=rel0 + sp * c, hint=rel0 + sp * c + 2)
        x = vload(4, (L[0], L[1] + 4 * c), vLd[0], sP, "0", c * 1024, "sc1", ("pd", n), seg=seg, **kw) if c < 4 else \
            vload(2, (L[2], L[3]), vLd[1], sP, "0", 0, "sc1", ("pd", n), seg=seg, **kw)
        x.rd.append(f"ok{n}"); o.append(x)
    return o
def pstores(rel, segs, n=0):
    o = [V(f"v_add_u32 v{vSt[0]}, s{sPst}, v{vL16}"), V(f"v_add_u32 v{vSt[1]}, s{sPst}, v{vL8}")]
    for i, k in enumerate((4, 0, 2, 1, 3)):
        kw = dict(seg=segs[i], rel=rel[i], hint=rel[i] + 2)
        if k == 4: o.append(vstore(2, ("v", TPK + 16), vSt[1], sP, "0", 0, "sc1", ("st", n), **kw))
        else: o.append(vstore(4, ("v", TPK + 4 * k), vSt[0], sP, "0", k * 1024, "sc1", ("st", n), **kw))
    return o
def tquads(): return AQ_([('a', QC + 4 * i) for i in range(8)] + [('a', AQ + 4 * i) for i in range(8)])
def tail_short():
    prog = []; aq = tquads()
    accs = [(("a", 32 * s), ("v", G9 + 4 * s)) for s in range(3)] + [(("v", TACC), ("v", TACC + 32))]
    for n in range(4):
        nd = [("S", n)]
        if n == 3: nd.append(("st", -4))
        prog.append(barrier(n, nd))
        if n == 0:
            FAR.append(f"L_redo:\ns_cmp_lg_u32 s{sMode}, 0\ns_cbranch_scc1 L_noredo\n" + restart(1))
            prog += [V("v_or3_b32 v36, v36, v37, v38"), V("v_or_b32 v36, v36, v39"),
                     I("v_readfirstlane_b32 s3, v36\ns_nop 0\ns_cmp_lg_u32 s3, 0\ns_cbranch_scc1 L_redo\nL_noredo:", "blob", rd=["v36"], wr=["s3"], cost=16, seg=0, hint=2)]
            prog += wo_dma(3, sSl4[3], PAIR, ("S", 3), 0, hint0=1)
            for r in range(32): prog.append(V(f"v_accvgpr_read_b32 v{TACC+r}, a{96+r}"))
            for r in range(4): prog.append(V(f"v_mov_b32 v{TACC+32+r}, v{G9+12+r}"))
            prog += late_setup()
        else:
            if n == 3: prog += flag(sFlP, -4, 3)
            wd = wo_dma(n - 1, sSlC, ((n + 1) % 4) * PAIR, ("O", n - 1), n, hint0=1 if n < 3 else None)
            if n < 3: prog += wd
            t_kstep(prog, aq, 3, 3, n - 1, *accs[n - 1], n - 1)
            prog += tail_next(False)
            t_pack(prog, accs[n - 1][0], accs[n - 1][1][1])
            if n == 3:
                prog.append(vmw([("st", -3)], 3, rel=15)); prog += flag(sFlP, -3, 3, rel=15)
            prog += pstores([18, 21, 24, 27, 30] if n < 3 else [17, 19, 21, 23, 25], [n] * 5, n - 5)
            if n == 3:
                prog += wd
                for h in range(3):
                    for f in range(4): prog.append(dsr128(o9frag(h, f), vO9[f], O9 + h * 4096, seg=3))
                for L in LAND[:3]: prog += [V(f"v_accvgpr_write_b32 a{L[3]+2}, 0"), V(f"v_accvgpr_write_b32 a{L[3]+3}, 0")]
        for f in range(3): t_kstep(prog, aq, 3, f, n, *accs[n], n)
    t_kstep(prog, aq, 3, 3, 3, *accs[3], 3, mf=False)
    prog += tail_next(False)
    return prog
def tail_trip(last):
    prog = []; aq = tquads(); aq.k = 60
    accb = OWN if last else TACC
    ac = (("v", accb), ("v", accb + 32))
    r0, rf, rp, rc = map(int, cfg.tl.split(","))
    for h in range(4):
        nd = [("O", h)]
        if h == (0 if last else 2): nd.append(("st", -1))
        if h == (1 if last else 2): nd.append(("pd", -1))
        if last and h == 1: nd += [("pl", 0), ("pl", 1)]
        if h == 3 and not last: nd.append(("pl", 0))
        prog.append(barrier(h, nd))
        if h == (0 if last else 2): prog += flag(sFlP, 0, h)
        if h == 0:
            prog += poll(0, sPpl, 0, rel=1)
            if last: prog += poll(1, sDX[4][1], 0, rel=2) + out_setup()
            t_kstep(prog, aq, 3, 3, None, ("v", TACC), ("v", TACC + 32), 3, reads=False)
            t_pack(prog, ("v", TACC), TACC + 32)
            wd = wo_dma(3, sSlC, PAIR, ("O", 3), 0, hint0=5 if not last else r0 + 10)
            prog += pstores([r0, r0 + 2, r0 + 4, r0 + 6, r0 + 8], [0] * 5) + wd if last else wd + pstores([21, 26, 31, 3, 8], [0, 0, 0, 1, 1])
        else:
            t_kstep(prog, aq, h - 1, 3, h - 1, *ac, h - 1)
        if last:
            if h == 1:
                prog += ident(LAND[0])
                prog.append(check(0, sPpl, 1)); prog.append(check(1, sDX[4][1], 1))
                prog += pdata(0, LAND[1], sPsrc, 1, rel0=3) + pdata(1, LAND[2], sDX[4][0], 1, rel0=18)
                prog.append(vmw([("st", 0)], 1, rel=rf)); prog += flag(sFl, 1, 1, rel=rf)
                prog += poll(2, sDX[5][1], 1, rel=rf + 8)
            if h == 2:
                prog.append(vmw([("pl", 2)], 2, rel=rp - 4)); x = check(2, sDX[5][1], 2); x.rel = rp - 4; x.hint = rp - 3; prog.append(x)
                prog += poll(3, sDX[6][1], 2, rel=rp)
                prog += pdata(2, LAND[0], sDX[5][0], 2, rel0=rp + 1, sp=2)
            if h == 3:
                prog.append(vmw([("pl", 3)], 3, rel=rc)); x = check(3, sDX[6][1], 3); x.rel = rc; x.hint = rc + 1; prog.append(x)
                prog += pdata(3, LAND[3], sDX[6][0], 3, rel0=rc + 1, sp=2)
        else:
            if h == 2:
                _lab[0] += 1; k = _lab[0]; im = ident(LAND[0])
                txt = f"s_cmp_lt_u32 s{sTrip}, 5\ns_cbranch_scc1 L_ni{k}\ns_cmp_eq_u32 s{sTrip}, 5\ns_cbranch_scc1 L_iz{k}\n" + "\n".join(x.text for x in im) + f"\ns_branch L_ni{k}\nL_iz{k}:\n" + "\n".join(x.text for x in ident(LAND[0], True)) + f"\nL_ni{k}:"
                prog.append(I(txt, "blob", rd=R("a", 64, 20) + [f"s{sTrip}"], wr=R("v", OWN, 36), cost=100, seg=2, rel=12, hint=13))
            if h == 3:
                prog.append(check(0, sPpl, 3))
                prog += pdata(0, LAND[0], sPsrc, 3, rel0=2)
            if h >= 1: prog += wo_dma(h - 1, sSlN, ((h + 1) % 4) * PAIR, ("O", h + 3), h, hint0={1: 13, 2: 3, 3: 17}[h])
        for f in range(3): t_kstep(prog, aq, h, f, h, *ac, h, first=(h == 0 and f == 0 and not last))
        if h == 3:
            if last: t_kstep(prog, aq, 3, 3, 3, *ac, 3)
            else:
                t_kstep(prog, aq, 3, 3, 3, *ac, 3, mf=False)
                prog += tail_next()
    return prog

def final():
    o = PS("s_waitcnt vmcnt(5)") + ident(LAND[1]) + ident(LAND[2]) + ident(LAND[0])
    o += PS(f"""
    s_lshl_b32 s3, s{sBr}, 10
    s_add_u32 s3, s3, s{sSlC}
    s_add_u32 s4, s3, 32768
    s_waitcnt vmcnt(0)""")
    o += ident(LAND[3])
    t_pack(o, ("v", OWN), OWN + 32)
    t = f"s_and_b32 s5, s{sWave}, 1\ns_cbranch_scc0 L_nsw\n"
    for k in range(4): t += f"v_swap_b32 v{TPK+4*k}, v{TPK+4*k+2}\nv_swap_b32 v{TPK+4*k+1}, v{TPK+4*k+3}\n"
    t += "L_nsw:\n"
    for qt in range(2):
        for Fn in range(2):
            r = TPK + (qt * 2 + Fn) * 4
            t += f"buffer_store_dwordx4 v[{r}:{r+3}], v{vOut[Fn]}, s[{sO}:{sO+3}], s{3+qt} offen {cfg.outf}\n"
    t += f"buffer_store_dwordx2 v[{TPK+16}:{TPK+17}], v{vOut[2]}, s[{sO}:{sO+3}], s3 offen {cfg.outf}\n"
    t += f"""
    s_or_b32 s5, s{sJ}, s{sWave}
    s_cmp_eq_u32 s5, 0
    s_cselect_b32 s5, 1024, s{sOOB}
    buffer_store_dword v255, v{vFl}, s[{sF}:{sF+3}], s5 offen
    """
    return o + PS(t)

def padit(seq, n):
    if not n: return seq
    out = []
    for x in seq:
        out.append(x)
        if x.kind == "barrier": out += PS("s_nop 15\n" * (n // 64))
    return out
def fine(seq, lane0):
    if cfg.timing == 5 and lane0 in (16, 32):
        out = []
        for x in seq:
            out.append(x)
            if x.kind == "barrier" and x.seg < 16:
                out += pad_hazards(PS("s_memrealtime s[90:91]\ns_waitcnt lgkmcnt(0)\ns_lshl_b64 exec, 1, s96\nv_mov_b32 v254, s90\ns_mov_b64 exec, -1\ns_add_u32 s96, s96, 1"))
        return out
    if cfg.timing != 3: return seq
    out = []; prev = None
    for x in seq:
        out.append(x)
        if x.kind == "barrier":
            if prev is not None: out.append(P(f"v_writelane_b32 v254, s90, {lane0+prev}"))
            out.append(P("s_memtime s[90:91]")); out.append(P("s_waitcnt lgkmcnt(0)")); prev = x.seg
    out.append(P(f"v_writelane_b32 v254, s90, {lane0+prev}"))
    return out

def shift(q, d, streams):
    return [(s, n + d) if s in streams else (s, n) for (s, n) in q]

def verify_vm(seq, q, name):
    q = list(q)
    import re as _re
    for x in seq:
        if x.kind == "vmem": q.append(x.tag)
        if x.kind in ("wait", "vmw"):
            m = _re.search(r"vmcnt\((\d+)\)", x.text)
            if m:
                n = int(m.group(1))
                if len(q) > n: q = q[len(q) - n:] if n else []
        if x.kind in ("barrier", "vmw"):
            bad = [t for t in x.vm if t in q]
            assert not bad, f"{name}: barrier {x.seg} misses {bad} q={q}"
    return q

def generate():
    out = []
    su = pad_hazards(setup() + setup2())
    q = verify_vm(su, [], "setup")
    sp = Sched(prologue(), vm_out=q, lookahead=cfg.la, lb=cfg.lb, name="pro", pre=su); pro = sp.run()
    q = verify_vm(pro, q, "pro")
    mid = pad_hazards(stamp(1) + PS(f"s_cmp_eq_u32 s{sMode}, 1\ns_cbranch_scc1 L_collect\nL_round:"), pro)
    steady = []
    for i in (-3, -2, -1): steady += [("K", i + 3)] * 2 + [("V", i + 2)] * 2 + [("W", i + 3)] * 2
    sa = Sched(bodyA(), vm_out=steady, lookahead=cfg.la, lb=cfg.lb, name="A", pre=pro + mid); A = sa.run()
    endA = PS(f"""
    s_mov_b64 s[{sMsk}:{sMsk+1}], -1
    v_mov_b32 v{vPF[0]}, s{sOOB}
    v_mov_b32 v{vPF[1]}, s{sOOB}
    s_lshl_b32 s3, s{sRnd}, 12
    s_add_u32 s3, s3, s{sQ9w}
    s_add_u32 s{sO9}, s3, {O9}
    s_cmp_ge_u32 s{sRnd}, 1
    s_cselect_b32 s{sWj}, s{sOOB}, s{sWj}
    s_cselect_b32 s{sWj2}, s{sOOB}, s{sWj2}
    s_add_u32 s{sRnd}, s{sRnd}, 1
    s_cmp_lt_u32 s{sRnd}, 3
    s_cbranch_scc1 L_round
    s_add_u32 s3, s{sJ}, s{sB}
    s_lshl_b32 s3, s3, 7
    """ + "".join(f"s_add_u32 s3, s3, 128\ns_and_b32 s{r}, s3, 0x3ff\n" for r in sSl4 + [sSlC, sSlN])) + stamp(2)
    for r in range(3):
        q = verify_vm(A, q, f"A{r}"); q = shift(q, -16, "KVW")
    assert check_hazards(A[:30], A + endA) == 0
    sb = Sched(bodyB(), vm_out=steady, lookahead=cfg.la, lb=cfg.lb, name="B", pre=A + endA); B = sb.run()
    q = verify_vm(B, q, "B")
    ts = pad_hazards(stamp(3) + tail_setup(), B)
    q = verify_vm(ts, q, "ts")
    sts = Sched(tail_short(), vm_out=q, lookahead=cfg.la, lb=cfg.lb, name="TS", pre=B + ts); TS = sts.run() + [P("L_trip:")]
    q = verify_vm(TS, q, "TS"); q = [("st", -1) if t == ("st", -2) else t for t in q]
    st_t = [("st", -1)] * 2 + [("O", 0)] * 4 + [("O", 1)] * 4 + [("pd", -1)] * 5 + [("O", 2)] * 4
    stt = Sched(tail_trip(False), vm_out=st_t, lookahead=cfg.la, lb=cfg.lb, name="T", pre=TS); T = stt.run()
    endT = tail_end() + stamp(4)
    for k in range(3):
        q = verify_vm(T, q, f"T{k}"); q = shift(q, -4, "O"); q = shift(q, -1, ("st", "pd", "fl", "pl"))
    assert check_hazards(T[:30], T + endT) == 0
    stl = Sched(tail_trip(True), vm_out=q, lookahead=cfg.la, lb=cfg.lb, name="TL", pre=T + endT); TL = stl.run()
    q = verify_vm(TL, q, "TL")
    fin = pad_hazards(stamp(5) + final() + stamp(6), TL)
    tm = []
    if cfg.timing:
        t = "s_waitcnt vmcnt(0) lgkmcnt(0)\n" + stamp(7)[0].text + "\ns_waitcnt lgkmcnt(0)\n"
        for n in range(0, 8): t += f"s_sub_u32 s{sTm+2*n}, s{sTm+2*n}, s98\nv_mov_b32 v{20+n}, s{sTm+2*n}\n"
        t += f"s_lshl_b32 s3, s2, 2\ns_add_u32 s3, s3, s{sWave}\ns_lshl_b32 s3, s3, 5\n"
        t += f"s_mov_b32 s{sF}, s100\ns_mov_b32 s{sF+1}, s101\ns_mov_b32 s{sF+2}, 0x10000\n"
        t += f"buffer_store_dwordx4 v[20:23], v{vFl}, s[{sF}:{sF+3}], s3 offen\nbuffer_store_dwordx4 v[24:27], v{vFl}, s[{sF}:{sF+3}], s3 offen offset:16\n"
        if cfg.timing == 4:
            t += f"s_mov_b32 s{sF}, s96\ns_mov_b32 s{sF+1}, s97\ns_mov_b32 s{sF+2}, 64\ns_lshr_b32 s3, s3, 5\ns_and_b32 s5, s3, 0x1ff\ns_lshr_b32 s3, s3, 9\ns_lshl_b32 s3, s3, 5\ns_cmp_eq_u32 s5, 0\ns_cselect_b32 s3, s3, s{sOOB}\n"
            t += f"buffer_store_dwordx4 v[20:23], v{vFl}, s[{sF}:{sF+3}], s3 offen\nbuffer_store_dwordx4 v[24:27], v{vFl}, s[{sF}:{sF+3}], s3 offen offset:16\n"
        if cfg.timing in (3, 5):
            t += f"s_lshl_b32 s3, s3, 3\ns_add_u32 s3, s3, 0x8000\ns_mov_b32 s{sF+2}, 0x80000\nv_lshrrev_b32 v75, 2, v253\nbuffer_store_dword v254, v75, s[{sF}:{sF+3}], s3 offen\n"
        tm = pad_hazards(PS(t), fin)
    head = PS("L_collect:\ns_waitcnt vmcnt(0)\nL_cround:")
    stc = [t for t in steady if t[0] != "V"]
    C = Sched(bodyC(), vm_out=stc, lookahead=cfg.la, lb=cfg.lb, name="C", pre=pro + head).run()
    endC = PS(f"""
    s_cmp_ge_u32 s{sRnd}, 1
    s_cselect_b32 s{sWj}, s{sOOB}, s{sWj}
    s_cselect_b32 s{sWj2}, s{sOOB}, s{sWj2}
    s_add_u32 s{sRnd}, s{sRnd}, 1
    s_cmp_lt_u32 s{sRnd}, 4
    s_cbranch_scc1 L_cround
    """ + restart(2))
    qc = []
    for r in range(4):
        qc = verify_vm(C, qc, f"C{r}"); qc = shift(qc, -16, "KW")
    assert check_hazards(C[:30], C + endC) == 0
    far = pad_hazards(PS("\n".join(FAR))) + head + C + pad_hazards(endC, C)
    stats = {n: (s.t, s.stall, s.nnop, len(s.mf), [b - a for a, b in zip(list(s.segtime.values()), list(s.segtime.values())[1:] + [s.t])]) for n, s in (("pro", sp), ("A", sa), ("B", sb), ("TS", sts), ("T", stt), ("TL", stl))}
    allc = su + fine(pro, 0) + mid + padit(fine(A, 16), cfg.pada) + endA + padit(fine(B, 32), cfg.padb) + ts + fine(TS, 58) + fine(T, 50) + endT + fine(TL, 54) + fin + tm + PS("L_end:\ns_endpgm") + far
    return allc, stats

HDR = """; Fused MHA (Q projection + attention + output projection + cross-workgroup reduce), generated by gen/gen.py
; @launch grid=(256,1,1) block=(256,1,1) lds={lds}
.amdgcn_target "amdgcn-amd-amdhsa--gfx950"
.text
.globl {n}
.p2align 8
.type {n},@function
{n}:
"""
FTR = """.section .rodata,"a"
.p2align 6
.amdhsa_kernel {n}
  .amdhsa_next_free_vgpr 512
  .amdhsa_next_free_sgpr 102
  .amdhsa_accum_offset 256
  .amdhsa_group_segment_fixed_size 0
  .amdhsa_kernarg_size 104
  .amdhsa_user_sgpr_count 2
  .amdhsa_user_sgpr_kernarg_segment_ptr 1
  .amdhsa_system_sgpr_workgroup_id_x 1
.end_amdhsa_kernel
"""
def text(code):
    return HDR.format(n=NAME, lds=LDS_TOTAL) + "\n".join(x.text for x in code) + "\n" + FTR.format(n=NAME)

if __name__ == "__main__":
    outp = sys.argv[1]
    for a in sys.argv[2:]:
        k, v = a.split("=")
        setattr(cfg, k, int(v) if v.lstrip("-").isdigit() else v.replace("+", " "))
    code, stats = generate()
    s = text(code)
    open(outp, "w").write(s)
    print("instrs", len(code), "bytes", len(s))
    for k, v in stats.items():
        if cfg.verbose: print("   segs", v[4])
        print(k, "est cycles", v[0], "stall", v[1], "nops", v[2], "mfma", v[3], "ideal", v[3] * 16)
```
